```python
import torch

def _softmax(x, axis=-1):
    return torch.softmax(x, dim=axis)

def _gelu(x):
    return torch.nn.functional.gelu(x, approximate='tanh')

def _silu(x):
    return torch.nn.functional.silu(x)

def _sigmoid(x):
    return torch.sigmoid(x)

def _layernorm(x, axis=-1, eps=1e-05):
    m = x.mean(dim=axis, keepdim=True)
    v = x.var(dim=axis, keepdim=True, unbiased=False)
    return (x - m) / torch.sqrt(v + eps)

def _scatter_add(tgt, idx, src, axis=0):
    return tgt.clone().index_add_(axis, idx, src)

def _segment_sum(src, seg, n):
    out = torch.zeros((n,) + src.shape[1:], dtype=src.dtype)
    return out.index_add_(0, seg, src)

def _pad(x, pw):
    flat = tuple((v for pair in reversed(pw) for v in pair))
    return torch.nn.functional.pad(x, flat)
kernel_name = 'standalone__autoregressive_conv_wavernn__speech'

def setup_inputs():

    _w = lambda a: (lambda t: t.to(torch.bfloat16) if t.is_floating_point() else t)(torch.as_tensor(a))
    B, T, D, K = (2, 16000, 256, 15)
    return {'x': _w((lambda *s: torch.randn(*s, dtype=torch.bfloat16) * 0.1)(B, T, D)), 'w': _w((lambda *s: torch.randn(*s, dtype=torch.bfloat16) * 0.1)(K, D, 2 * D))}

def reference(x, w):
    B, T, D = x.shape
    K = w.shape[0]
    dil = 2
    pad = (K - 1) * dil
    xp = _pad(x, ((0, 0), (pad, 0), (0, 0)))
    h = torch.einsum('btd,de->bte', xp[:, 0:T, :], w[0])
    for i in range(1, K):
        h = h + torch.einsum('btd,de->bte', xp[:, i * dil:i * dil + T, :], w[i])
    f, g = (h[..., :D].clone(), h[..., D:].clone())
    return torch.tanh(f) * _sigmoid(g)
```

```python
import sys, struct, math, argparse

KN = "standalone__autoregressive_conv_wavernn__speech_kernel"
PREP = "wprep_kernel"


def f2u(x):
    return struct.unpack("<I", struct.pack("<f", x))[0]


PL = 181
PLB = PL * 16
US = 8 * PLB
STREAM = 200 * 1024
MB = 10


class Cfg:
    p1 = ["a", "c", "b"]
    p2 = ["0", "i"]
    look_v = 28
    look_b = 100
    nfifo = 8
    nraw = 12
    stamps = False
    age_lgkm = 10
    age_vm = 56
    noise = 0.0
    prefetch_code = True
    bar_delay = 8
    naive = False


def step_list(cfg):
    st = []
    for ph in (cfg.p1, cfg.p2):
        for c in range(4):
            for k in ph:
                for kk in range(2):
                    st.append((k, c, kk))
    return st


def regs(prefix, base, n):
    return [f"{prefix}{base + i}" for i in range(n)]


def rng(prefix, base, n):
    return f"{prefix}[{base}:{base + n - 1}]" if n > 1 else f"{prefix}{base}"


class Op:
    __slots__ = ("txt", "kind", "rd", "wr", "earliest", "deadline", "after", "pos", "tpos", "srcc", "minage")

    def __init__(s, txt, kind, rd=(), wr=(), earliest=0, deadline=None, after=(), srcc=(), minage=0):
        s.txt = txt; s.kind = kind; s.rd = list(rd); s.wr = list(wr)
        s.earliest = earliest; s.deadline = deadline; s.after = list(after)
        s.pos = None; s.tpos = None; s.srcc = list(srcc); s.minage = minage


COST = {"V": 1, "T": 2, "R": 1, "W": 2, "G": 2, "S": 2, "A": 1, "B": 1, "X": 1, "N": 1}


class Emitter:
    def __init__(s, cfg):
        s.cfg = cfg
        s.out = []
        s.n = 0
        s.t = -1
        s.vm = []
        s.lg = []
        s.pend = {}
        s.lastw = {}
        s.lastc = {}
        s.stats = {"wait": 0, "nop": 0, "over": 0}

    def raw(s, txt, states=1):
        s.out.append(txt)
        s.n += states

    def need_wait(s, op):
        v = l = None
        for r in op.rd + op.wr:
            p = s.pend.get(r)
            if p is None:
                continue
            if p.kind == "G":
                i = s.vm.index(p); v = i if v is None else max(v, i)
            else:
                i = s.lg.index(p); l = i if l is None else max(l, i)
        return v, l

    def youngest_needed_age(s, op):
        v, l = s.need_wait(op)
        av = None if v is None else s.t - s.vm[v].tpos
        al = None if l is None else s.t - s.lg[l].tpos
        return av, al

    def retire(s, q, upto):
        for p in q[:upto + 1]:
            for r in p.wr:
                if s.pend.get(r) is p:
                    del s.pend[r]
        del q[:upto + 1]

    def emit_wait(s, v, l, extend=True):
        if extend:
            for i, p in enumerate(s.vm):
                if s.t - p.tpos >= s.cfg.age_vm and (v is None or i > v):
                    v = i
            for i, p in enumerate(s.lg):
                if s.t - p.tpos >= s.cfg.age_lgkm and (l is None or i > l):
                    l = i
        parts = []
        if v is not None:
            nv = len(s.vm) - 1 - v
            assert nv <= 63
            parts.append(f"vmcnt({nv})"); s.retire(s.vm, v)
        if l is not None:
            nl = len(s.lg) - 1 - l
            assert nl <= 15, nl
            parts.append(f"lgkmcnt({nl})"); s.retire(s.lg, l)
        if parts:
            s.raw("s_waitcnt " + " ".join(parts)); s.stats["wait"] += 1

    def wait_all(s, vm=True, lg=True):
        s.emit_wait(len(s.vm) - 1 if (vm and s.vm) else None, len(s.lg) - 1 if (lg and s.lg) else None, extend=False)

    def hazard(s, op):
        need = 0
        for r in op.rd + op.wr:
            w = s.lastw.get(r)
            if w is not None:
                k, n = w
                d = s.n - n - 1
                req = 0
                if k == "M":
                    if op.kind == "M":
                        req = 0 if (r in op.srcc or (r in op.wr and r not in op.rd)) else 8
                        if r in op.wr and r not in op.srcc:
                            req = 8
                    else:
                        req = 8
                elif k in ("V", "T"):
                    if op.kind == "M" and r in op.rd:
                        req = 2
                    elif k == "T" and op.kind == "V" and r in op.rd:
                        req = 1
                    elif k == "T" and op.kind in ("W", "S") and r in op.rd:
                        req = 1
                need = max(need, req - d)
        if op.kind in ("V", "T"):
            for r in op.wr:
                n = s.lastc.get(r)
                if n is not None:
                    need = max(need, 3 - (s.n - n - 1))
        return need

    def emit(s, op):
        for a in op.after:
            assert a.pos is not None, (op.txt, a.txt)
        v, l = s.need_wait(op)
        if v is not None or l is not None:
            s.emit_wait(v, l)
        h = s.hazard(op)
        if h > 0:
            s.raw(f"s_nop {h - 1}", h); s.stats["nop"] += 1
        if op.kind == "B":
            s.wait_all(vm=False)
        if op.kind in ("R", "W") and len(s.lg) >= 15:
            s.emit_wait(None, 0)
        if op.kind in ("G", "S") and len(s.vm) >= 60:
            s.emit_wait(0, None)
        op.pos = s.n
        if op.kind == "M":
            s.t += 1
            for r in op.srcc:
                s.lastc[r] = s.n
        op.tpos = s.t
        for r in op.wr:
            s.lastw[r] = (op.kind, s.n)
        if op.kind in ("G", "S"):
            s.vm.append(op)
        if op.kind in ("R", "W"):
            s.lg.append(op)
        if op.kind in ("G", "R"):
            for r in op.wr:
                s.pend[r] = op
        s.raw(op.txt)


class Pool:
    def __init__(s, lst):
        s.free = list(lst)

    def get(s):
        return s.free.pop(0)

    def put(s, r):
        s.free.append(r)


def gen_prep(cfg):
    st = step_list(cfg)
    L = []; A = L.append
    A(f".globl {PREP}"); A(".p2align 8"); A(f".type {PREP},@function"); A(f"{PREP}:")
    A("s_cmp_ge_u32 s2, 160"); A("s_cbranch_scc1 Lp_done")
    A("s_load_dwordx2 s[4:5], s[0:1], 8")
    A("s_load_dwordx2 s[8:9], s[0:1], 32")
    A("s_and_b32 s12, s2, 31")
    A("s_lshr_b32 s13, s2, 5")
    A("s_mul_i32 s14, s13, 786432")
    A("s_lshl_b32 s15, s12, 13")
    A("s_add_u32 s14, s14, s15")
    for i in range(6):
        A(f"s_add_u32 s{16 + i}, s14, {(i // 2) * 262144 + (i % 2) * 4096}")
    A("v_lshlrev_b32 v1, 2, v0")
    A("s_mov_b32 s6, 3932160"); A("s_mov_b32 s7, 0x20000")
    A(f"s_mov_b32 s10, {32 * STREAM}"); A("s_mov_b32 s11, 0x20000")
    A("s_waitcnt lgkmcnt(0)")
    for dd in range(8):
        for tap in range(3):
            A(f"buffer_load_dword v{8 + tap * 8 + dd}, v1, s[4:7], s{16 + tap * 2 + dd // 4} offen offset:{(dd % 4) * 1024}")
    A("v_and_b32 v2, 127, v0")
    A("v_lshrrev_b32 v3, 3, v2"); A("v_lshlrev_b32 v3, 1, v3")
    A("v_and_b32 v4, 1, v2"); A("v_add_u32 v3, v3, v4")
    A(f"v_mul_u32_u24 v3, {STREAM}, v3")
    A("v_bfe_u32 v4, v2, 1, 2"); A("v_lshlrev_b32 v4, 6, v4")
    A("v_lshrrev_b32 v5, 7, v0"); A("v_lshlrev_b32 v5, 5, v5")
    A("v_add3_u32 v3, v3, v4, v5")
    A("s_lshr_b32 s22, s12, 3")
    A("s_bfe_u32 s23, s12, 0x10002")
    A("s_and_b32 s30, s12, 3"); A("s_lshl_b32 s30, s30, 8")
    A("s_lshl_b32 s31, s13, 10"); A("s_add_u32 s30, s30, s31")
    A("s_mul_i32 s31, s23, 5120"); A("s_add_u32 s30, s30, s31")
    prods = ["a", "c", "b", "0", "i"]
    for i, k in enumerate(prods):
        base = st.index((k, 0, 0)); mul = st.index((k, 1, 0)) - base
        for c in range(4):
            for kk in range(2):
                assert st.index((k, c, kk)) == base + mul * c + kk
        A(f"s_mul_i32 s31, s22, {mul * 5120}")
        A(f"s_add_u32 s31, s31, {base * 5120}")
        A(f"s_add_u32 s{24 + i}, s30, s31")
    A(f"s_mov_b32 s32, {f2u(-2.0 / 3.0):#x}"); A(f"s_mov_b32 s33, {f2u(1.0 / 3.0):#x}"); A(f"s_mov_b32 s34, {f2u(-2.0 / 9.0):#x}")
    A("s_mov_b32 s35, 0x05040100"); A("s_mov_b32 s36, 0x07060302"); A(f"s_mov_b32 s37, {f2u(0.25):#x}")
    A("s_waitcnt vmcnt(0)")
    o = lambda p, par, w: 64 + (p * 2 + par) * 4 + w
    for w in range(4):
        for par in range(2):
            for e in range(2):
                dd = 2 * w + e
                t = 40 + e * 8
                for tap in range(3):
                    if par == 0:
                        A(f"v_lshlrev_b32 v{t + tap}, 16, v{8 + tap * 8 + dd}")
                    else:
                        A(f"v_and_b32 v{t + tap}, 0xffff0000, v{8 + tap * 8 + dd}")
                A(f"v_fma_f32 v{t + 3}, v{t + 1}, 0.5, v{t}")
                A(f"v_fma_f32 v{t + 3}, v{t + 2}, s37, v{t + 3}")
                A(f"v_mul_f32 v{t + 3}, s32, v{t + 3}")
                A(f"v_fma_f32 v{t + 4}, v{t + 1}, 2.0, v{t}")
                A(f"v_fma_f32 v{t + 4}, v{t + 2}, 4.0, v{t + 4}")
                A(f"v_mul_f32 v{t + 4}, s33, v{t + 4}")
                A(f"v_sub_f32 v{t + 5}, v{t}, v{t + 1}")
                A(f"v_add_f32 v{t + 5}, v{t + 5}, v{t + 2}")
                A(f"v_mul_f32 v{t + 5}, s34, v{t + 5}")
            for p in range(3):
                A(f"v_cvt_pk_bf16_f32 v{o(p, par, w)}, v{43 + p}, v{51 + p}")
            A(f"v_perm_b32 v{o(3, par, w)}, v{8 + 2 * w + 1}, v{8 + 2 * w}, s{35 + par}")
            A(f"v_perm_b32 v{o(4, par, w)}, v{24 + 2 * w + 1}, v{24 + 2 * w}, s{35 + par}")
    for p in range(5):
        for par in range(2):
            b = o(p, par, 0)
            A(f"buffer_store_dwordx4 v[{b}:{b + 3}], v3, s[8:11], s{24 + p} offen offset:{par * 16}")
    A("Lp_done:")
    A("s_endpgm")
    return L


def gen_main(cfg):
    st = step_list(cfg)
    nst = len(st)
    E = Emitter(cfg)
    A = E.raw

    vp = [1]
    def valloc(n, align=1):
        while vp[0] % align:
            vp[0] += 1
        b = vp[0]; vp[0] += n
        assert vp[0] <= 256, vp[0]
        return b
    vXO = valloc(6)
    vBO = valloc(2)
    vWB = valloc(2)
    vRM = valloc(2); vRS = valloc(2)
    vOM = valloc(1); vOS = valloc(1)
    vACCB = valloc(84, 4)
    vFIFO = valloc(4 * cfg.nfifo, 4)
    vRAW = valloc(4 * cfg.nraw, 4)
    vOUT = valloc(12, 4)
    NT = 30
    vT = valloc(NT)
    NE = 16
    vE = valloc(NE, 2)
    aA, aC, aB = 0, 84, 168
    accreg = {"a": ("a", aA), "0": ("a", aA), "c": ("a", aC), "i": ("a", aC), "b": ("v", vACCB)}
    sX, sU, sO = 4, 8, 12
    sBO = 16
    sM25, sM15, sM23, sCF, sCG, sCL = 17, 18, 19, 24, 25, 26
    sHALF = 28
    sST = 32
    sSTAMP = 48

    def stamp(i):
        if cfg.stamps:
            A(f"s_memtime s[{sSTAMP + 2 * i}:{sSTAMP + 2 * i + 1}]")

    A(f".globl {KN}"); A(".p2align 8"); A(f".type {KN},@function"); A(f"{KN}:")
    A("s_cmp_lt_u32 s2, 256"); A("s_cbranch_scc1 Lm_go"); A("s_endpgm"); A("Lm_go:")
    A("s_load_dwordx2 s[4:5], s[0:1], 0")
    A("s_load_dwordx2 s[12:13], s[0:1], 16")
    A("s_load_dwordx2 s[8:9], s[0:1], 32")
    if cfg.stamps:
        A(f"s_memrealtime s[{sSTAMP}:{sSTAMP + 1}]"); stamp(2)
    A("s_and_b32 s40, s2, 7"); A("s_lshr_b32 s41, s2, 3")
    A("s_lshl_b32 s40, s40, 3"); A("s_lshr_b32 s42, s41, 2"); A("s_add_u32 s40, s40, s42")
    A("s_and_b32 s41, s41, 3")
    A("s_lshr_b32 s42, s40, 5")
    A("s_bfe_u32 s43, s40, 0x10004")
    A("s_bfe_u32 s44, s40, 0x30001")
    A("s_and_b32 s45, s40, 1")
    A("s_mul_i32 s42, s42, 8192000"); A("s_lshl_b32 s43, s43, 9"); A("s_add_u32 s42, s42, s43")
    A("s_mul_i32 s46, s44, 1000")
    A("s_mul_i32 s47, s45, 480"); A("s_add_u32 s47, s47, s46"); A("s_sub_u32 s47, s47, 14")
    A("s_lshl_b32 s47, s47, 10")
    t0 = vT
    A(f"v_lshrrev_b32 v{t0}, 3, v0"); A(f"v_min_u32 v{t0}, 29, v{t0}")
    A(f"v_and_b32 v{t0 + 1}, 7, v0")
    A(f"v_mul_u32_u24 v{t0 + 2}, {18 * 1024}, v{t0}")
    A(f"v_lshl_add_u32 v{t0 + 2}, v{t0 + 1}, 4, v{t0 + 2}")
    A(f"v_add_u32 v{vXO}, s47, v{t0 + 2}")
    RG = [0, 2, 6, 10, 14, 18]
    for i in range(1, 6):
        A(f"v_add_u32 v{vXO + i}, {RG[i] * 1024}, v{vXO}")
    A("s_sub_u32 s6, 16384000, s42"); A("s_mov_b32 s7, 0x20000")
    A("s_waitcnt lgkmcnt(0)")
    A("s_add_u32 s4, s4, s42"); A("s_addc_u32 s5, s5, 0")

    def xaddr(rho, c):
        gi = max(i for i in range(6) if RG[i] <= rho)
        return vXO + gi, (rho - RG[gi]) * 1024 + c * 128

    mf = []
    frags = []
    acc_touch = {}
    buse = {}
    started = set()
    step_start = []
    for si, (k, c, kk) in enumerate(st):
        step_start.append(len(mf))
        pre, base = accreg[k]
        seq = []
        for j in range(MB + 4):
            seq.append(("m", j))
            if 4 <= j <= 8:
                seq.append(("s", j - 4))
        for (fk, j) in seq:
            fr = vFIFO + 4 * (len(frags) % cfg.nfifo)
            first = len(mf)
            if fk == "m":
                lst = [(a, sl, (j - a) * 2 + sl) for a in range(max(0, j - MB + 1), min(4, j) + 1) for sl in range(2)]
            else:
                lst = [(j, 0, 2 * MB)]
            for (a, sl, u) in lst:
                br = aB + ((si % 2) * 10 + a * 2 + sl) * 4
                d = base + 4 * u
                key = (pre, base, u)
                D = rng(pre, d, 4)
                fresh = key not in started
                started.add(key)
                C = "0" if fresh else D
                op = Op(f"v_mfma_f32_16x16x32_bf16 {D}, {rng('a', br, 4)}, {rng('v', fr, 4)}, {C}", "M",
                        rd=regs("a", br, 4) + regs("v", fr, 4) + ([] if fresh else regs(pre, d, 4)),
                        wr=regs(pre, d, 4), srcc=([] if fresh else regs(pre, d, 4)))
                acc_touch.setdefault((k, u), []).append(len(mf))
                bu = buse.setdefault((si, a, sl), [len(mf), len(mf)]); bu[1] = len(mf)
                mf.append(op)
            frags.append((si, fk, j, first, len(mf) - 1, fr))
    NM = len(mf)
    step_start.append(NM)
    chunks = []
    si = 0
    for ph in (cfg.p1, cfg.p2):
        for c in range(4):
            chunks.append((ph, c, si, 2 * len(ph))); si += 2 * len(ph)
    chunk_of_step = {}
    for ci, (ph, c, s0, ns) in enumerate(chunks):
        for s_ in range(s0, s0 + ns):
            chunk_of_step[s_] = ci

    bstream = []
    nld = 0
    for si in range(nst):
        for a in range(5):
            t = si * 5 + a
            if t % 4 == 0 and t > 0:
                bstream.append(Op(f"s_add_u32 s{sBO}, s{sBO}, 4096", "A", earliest=bstream[-1].earliest))
            for sl in range(2):
                br = aB + ((si % 2) * 10 + a * 2 + sl) * 4
                first = buse[(si, a, sl)][0]
                prev = buse[(si - 2, a, sl)][1] if si >= 2 else -1
                tgt = step_start[si] - cfg.look_b + ((a * 2 + sl) * 105) // 10 - 5
                e = max(prev, min(tgt, first - 60))
                bstream.append(Op(f"buffer_load_dwordx4 {rng('a', br, 4)}, v{vBO + sl}, s[{sU}:{sU + 3}], s{sBO} offen offset:{(t % 4) * 1024}",
                                  "G", wr=regs("a", br, 4), earliest=e, deadline=first - 30))

    barrier = [Op("s_barrier", "B") for _ in chunks]
    rawpool_regs = [vRAW + 4 * i for i in range(cfg.nraw)]
    raw_free = [(r, None) for r in rawpool_regs]
    extra_raw = [(vACCB + 4 * i, None) for i in range(18 - cfg.nraw + 6)] if True else []
    xstream = []
    tstreams = []
    T = Pool([vT + i for i in range(NT)])

    def V(txt, rd, wr, lst):
        op = Op(txt, "V", rd=[f"v{r}" for r in rd], wr=[f"v{r}" for r in wr]); lst.append(op); return op

    for ci, (ph, c, s0, ns) in enumerate(chunks):
        ts = []
        setb = ci % 2
        needs_edge = ("0" in ph) or ("i" in ph)
        rows = {}
        def load_row(rho):
            if ci == 0 and extra_raw:
                cand = extra_raw.pop(0); tmp = True
            else:
                cand = raw_free.pop(0); tmp = False
            r, last = cand
            va, off = xaddr(rho, c)
            op = Op(f"buffer_load_dwordx4 {rng('v', r, 4)}, v{va}, s[{sX}:{sX + 3}], 0 offen offset:{off}", "G",
                    wr=regs("v", r, 4), after=([last] if last else []))
            op.minage = ci
            xstream.append(op)
            rows[rho] = (r, op, tmp)
        def free_row(rho, lastop):
            r, op, tmp = rows.pop(rho)
            if not tmp:
                raw_free.append((r, lastop))
        def unpack(rho, w, hi):
            r, lop, _ = rows[rho]
            t = T.get()
            if hi:
                o = V(f"v_and_b32 v{t}, 0xffff0000, v{r + w}", [r + w], [t], ts)
            else:
                o = V(f"v_lshlrev_b32 v{t}, 16, v{r + w}", [r + w], [t], ts)
            o.after.append(lop)
            return t
        carry = {}
        for n in range(6):
            newrows = [3 * n + 2, 3 * n + 3, 3 * n + 4] if needs_edge else [3 * n + 1, 3 * n + 2, 3 * n + 3]
            if needs_edge and n == 0:
                newrows = [0, 1] + newrows
            for rho in newrows:
                load_row(rho)
            for w in range(4):
                res = {k: [None, None] for k in ph}
                for hi in range(2):
                    if needs_edge:
                        if n == 0:
                            carry[(w, hi)] = (unpack(0, w, hi), unpack(1, w, hi))
                        u0, u1 = carry[(w, hi)]
                        u2 = unpack(3 * n + 2, w, hi); u3 = unpack(3 * n + 3, w, hi); u4 = unpack(3 * n + 4, w, hi)
                    else:
                        u1 = unpack(3 * n + 1, w, hi); u2 = unpack(3 * n + 2, w, hi); u3 = unpack(3 * n + 3, w, hi)
                    s1 = T.get(); s2 = T.get()
                    V(f"v_add_f32 v{s1}, v{u1}, v{u2}", [u1, u2], [s1], ts)
                    V(f"v_add_f32 v{s2}, v{u2}, v{u3}", [u2, u3], [s2], ts)
                    if "b" in ph:
                        tb = T.get()
                        V(f"v_add_f32 v{tb}, v{u1}, v{u3}", [u1, u3], [tb], ts)
                        V(f"v_fmac_f32 v{tb}, s{sM25}, v{u2}", [u2, tb], [tb], ts)
                        res["b"][hi] = tb
                    if needs_edge:
                        V(f"v_add_f32 v{u0}, v{u0}, v{u3}", [u0, u3], [u0], ts)
                        V(f"v_add_f32 v{u1}, v{u1}, v{u4}", [u1, u4], [u1], ts)
                        V(f"v_fmac_f32 v{u0}, s{sM15}, v{s1}", [u0, s1], [u0], ts)
                        V(f"v_fmac_f32 v{u1}, s{sM15}, v{s2}", [u1, s2], [u1], ts)
                        res["0"][hi] = u0; res["i"][hi] = u1
                        carry[(w, hi)] = (u3, u4)
                        T.put(u2); T.put(s1); T.put(s2)
                        assert "a" not in ph
                    else:
                        V(f"v_fma_f32 v{u2}, v{s1}, -2.0, v{s2}", [s1, s2], [u2], ts)
                        V(f"v_fmac_f32 v{s2}, -0.5, v{s1}", [s1, s2], [s2], ts)
                        res["a"][hi] = u2; res["c"][hi] = s2
                        T.put(u1); T.put(u3); T.put(s1)
                for pi, k in enumerate(ph):
                    lo, hi_ = res[k]
                    V(f"v_cvt_pk_bf16_f32 v{vOUT + 4 * pi + w}, v{lo}, v{hi_}", [lo, hi_], [vOUT + 4 * pi + w], ts)
                    T.put(lo); T.put(hi_)
            last = ts[-1]
            for rho in newrows:
                free_row(rho, last)
            for pi, k in enumerate(ph):
                op = Op(f"ds_write_b128 v{vWB + setb}, {rng('v', vOUT + 4 * pi, 4)} offset:{pi * US + n * 16}", "W",
                        rd=regs("v", vOUT + 4 * pi, 4), after=([barrier[ci - 1]] if ci >= 1 else []))
                ts.append(op)
        if needs_edge:
            for v_ in carry.values():
                T.put(v_[0]); T.put(v_[1])
        barrier[ci].after = [ts[-1]]
        tstreams.append(ts)

    vstream = []
    bar_time = {}
    for fi, (si, fk, j, first, last, fr) in enumerate(frags):
        k, c, kk = st[si]
        ci = chunk_of_step[si]
        ph = chunks[ci][0]
        prev = frags[fi - cfg.nfifo][4] if fi >= cfg.nfifo else -1
        e = max(prev, first - cfg.look_v)
        if ci not in bar_time:
            be = (vstream[-1].earliest + cfg.bar_delay) if vstream else -1
            bar_time[ci] = be
            barrier[ci].earliest = be
            barrier[ci].deadline = be
            vstream.append(barrier[ci])
        base = (vRM if fk == "m" else vRS) + ci % 2
        off = ph.index(k) * US + kk * 4 * PLB + j * 16
        vstream.append(Op(f"ds_read_b128 {rng('v', fr, 4)}, v{base} offset:{off}", "R", wr=regs("v", fr, 4),
                          earliest=e, deadline=first - 6, after=[barrier[ci]]))

    lastp1 = 3
    for ci in range(1, 8):
        ts = tstreams[ci]
        t_lo = bar_time[ci - 1] + 1
        t_hi = bar_time[ci] - 12
        if ci == lastp1 + 1 and len(cfg.p1) == 3:
            t_hi = step_start[chunks[lastp1][2] + 3] + 50
        tot = sum(COST[o.kind] for o in ts); acc = 0
        for o in ts:
            o.earliest = t_lo + (acc * (t_hi - t_lo)) // tot
            acc += COST[o.kind]
            o.deadline = bar_time[ci]

    EP = Pool([vE + i for i in range(NE)])
    groups = []
    HZ = 9
    for u in range(2 * MB + 1):
        ready = max(acc_touch[("a", u)][-1], acc_touch[("c", u)][-1]) + HZ
        need = min(acc_touch[("0", u)][0], acc_touch[("i", u)][0]) - 2
        bt = acc_touch[("b", u)]
        wins = []
        edges = [(-10**9, bt[0])] + [(bt[i], bt[i + 1]) for i in range(len(bt) - 1)] + [(bt[-1], 10**9)]
        for (x, y) in edges[1:]:
            lo = max(x + HZ, ready); hi = min(y - 2, need)
            if hi - lo >= 20:
                wins.append((lo, hi))
        assert wins
        for i in range(4):
            lo, hi = wins[((u * 4 + i) * len(wins) * 2 // 8 + 0) % len(wins)] if False else wins[(u % 2 * 4 + i) * len(wins) // 8]
            groups.append((lo, hi, u, i))
    groups.sort()
    basis = []
    for (lo, hi, u, i) in groups:
        ra, rc, rb = aA + 4 * u + i, aC + 4 * u + i, vACCB + 4 * u + i
        x = EP.get(); y = EP.get(); s_ = EP.get()
        ops = [Op(f"v_accvgpr_read_b32 v{x}, a{ra}", "V", rd=[f"a{ra}"], wr=[f"v{x}"]),
               Op(f"v_accvgpr_read_b32 v{y}, a{rc}", "V", rd=[f"a{rc}"], wr=[f"v{y}"]),
               Op(f"v_add_f32 v{s_}, v{x}, v{y}", "V", rd=[f"v{x}", f"v{y}"], wr=[f"v{s_}"]),
               Op(f"v_add_f32 v{x}, v{x}, v{s_}", "V", rd=[f"v{x}", f"v{s_}"], wr=[f"v{x}"]),
               Op(f"v_add_f32 v{y}, v{y}, v{s_}", "V", rd=[f"v{y}", f"v{s_}"], wr=[f"v{y}"]),
               Op(f"v_fmac_f32 v{rb}, s{sM23}, v{s_}", "V", rd=[f"v{rb}", f"v{s_}"], wr=[f"v{rb}"]),
               Op(f"v_accvgpr_write_b32 a{ra}, v{x}", "V", rd=[f"v{x}"], wr=[f"a{ra}"]),
               Op(f"v_accvgpr_write_b32 a{rc}, v{y}", "V", rd=[f"v{y}"], wr=[f"a{rc}"])]
        for o in ops:
            o.earliest = lo; o.deadline = hi
        basis += ops
        EP.put(x); EP.put(y); EP.put(s_)
    for i in range(len(basis) - 2, -1, -1):
        basis[i].deadline = min(basis[i].deadline, basis[i + 1].deadline)
    for o in basis:
        assert o.earliest <= o.deadline, (o.txt, o.earliest, o.deadline)

    epi = []
    def epi_unit(yi, u, dst, earliest):
        ops = []
        def O(txt, kind, rd, wr):
            ops.append(Op(txt, kind, rd=rd, wr=wr, earliest=earliest))
        zb = [vACCB + 4 * u + i for i in range(4)]
        cs = [sCF, sCF, sCG, sCG]
        z = [EP.get() for _ in range(4)]
        if yi == 1:
            for i in range(4):
                O(f"v_mul_f32 v{zb[i]}, s{cs[i]}, v{zb[i]}", "V", [f"v{zb[i]}"], [f"v{zb[i]}"])
            for i in range(2):
                O(f"v_min_f32 v{z[i]}, -v{zb[i]}, s{sCL}", "V", [f"v{zb[i]}"], [f"v{z[i]}"])
            for i in range(2):
                O(f"v_exp_f32 v{z[i]}, v{z[i]}", "T", [f"v{z[i]}"], [f"v{z[i]}"])
            for i in range(2, 4):
                O(f"v_exp_f32 v{z[i]}, -v{zb[i]}", "T", [f"v{zb[i]}"], [f"v{z[i]}"])
        else:
            ab = (aA if yi == 0 else aC) + 4 * u
            for i in range(4):
                O(f"v_accvgpr_read_b32 v{z[i]}, a{ab + i}", "V", [f"a{ab + i}"], [f"v{z[i]}"])
            for i in range(4):
                O(f"v_fma_f32 v{z[i]}, v{z[i]}, s{cs[i]}, v{zb[i]}", "V", [f"v{z[i]}", f"v{zb[i]}"], [f"v{z[i]}"])
            for i in range(2):
                O(f"v_min_f32 v{z[i]}, s{sCL}, v{z[i]}", "V", [f"v{z[i]}"], [f"v{z[i]}"])
            for i in range(4):
                O(f"v_exp_f32 v{z[i]}, v{z[i]}", "T", [f"v{z[i]}"], [f"v{z[i]}"])
        p = [EP.get() for _ in range(2)]
        for i in range(2):
            O(f"v_add_f32 v{p[i]}, 1.0, v{z[i]}", "V", [f"v{z[i]}"], [f"v{p[i]}"])
        for i in range(2):
            O(f"v_fmac_f32 v{p[i]}, v{p[i]}, v{z[2 + i]}", "V", [f"v{p[i]}", f"v{z[2 + i]}"], [f"v{p[i]}"])
        for i in range(2):
            O(f"v_rcp_f32 v{p[i]}, v{p[i]}", "T", [f"v{p[i]}"], [f"v{p[i]}"])
        for i in range(2):
            O(f"v_fma_f32 v{p[i]}, -v{z[i]}, v{p[i]}, v{p[i]}", "V", [f"v{z[i]}", f"v{p[i]}"], [f"v{p[i]}"])
        O(f"v_cvt_pk_bf16_f32 v{dst}, v{p[0]}, v{p[1]}", "V", [f"v{p[0]}", f"v{p[1]}"], [f"v{dst}"])
        for r in z + p:
            EP.put(r)
        return ops
    stg = [vE + NE - 4, vE + NE - 2]
    for r in range(vE + NE - 4, vE + NE):
        EP.free.remove(r)
    pk = [EP.get(), EP.get()]
    basis_done = {}
    for gi, (lo, hi, u, i) in enumerate(groups):
        basis_done[u] = max(basis_done.get(u, 0), hi)
    cnt = 0
    for yi, k in ((1, "b"), (0, "0"), (2, "i")):
        items = []
        for m in range(MB + 1):
            us = [2 * m, 2 * m + 1] if m < MB else [2 * MB]
            e = max(max(acc_touch[(k, u)][-1], acc_touch[("b", u)][-1]) + HZ for u in us)
            items.append((e, m, us))
        items.sort()
        for (e, m, us) in items:
            sg = stg[cnt % 2]; cnt += 1
            if m < MB:
                epi += epi_unit(yi, us[0], pk[0], e)
                epi += epi_unit(yi, us[1], pk[1], e)
                epi.append(Op(f"v_cndmask_b32 v{sg}, v{pk[0]}, v{pk[1]}, s[{sHALF}:{sHALF + 1}]", "V", rd=[f"v{pk[0]}", f"v{pk[1]}"], wr=[f"v{sg}"], earliest=e))
                epi.append(Op(f"v_cndmask_b32 v{sg + 1}, v{pk[1]}, v{pk[0]}, s[{sHALF}:{sHALF + 1}]", "V", rd=[f"v{pk[0]}", f"v{pk[1]}"], wr=[f"v{sg + 1}"], earliest=e))
                row = 3 * m + yi
                epi.append(Op(f"buffer_store_dwordx2 v[{sg}:{sg + 1}], v{vOM}, s[{sO}:{sO + 3}], s{sST + row // 4} offen offset:{(row % 4) * 1024}", "S",
                              rd=[f"v{sg}", f"v{sg + 1}"], earliest=e))
            else:
                epi += epi_unit(yi, us[0], sg, e)
                epi.append(Op(f"buffer_store_dword v{sg}, v{vOS}, s[{sO}:{sO + 3}], 0 offen offset:{yi * 1024}", "S", rd=[f"v{sg}"], earliest=e))
    estream = basis + epi

    n0 = sum(1 for o in xstream if o.minage == 0)
    for o in xstream[:n0]:
        E.emit(o)
    xi = n0
    A(f"v_and_b32 v{t0 + 2}, 63, v0")
    A(f"v_lshrrev_b32 v{t0 + 3}, 6, v0")
    A("s_lshl_b32 s43, s41, 3"); A("s_add_u32 s43, s43, s45")
    A(f"v_lshl_add_u32 v{t0 + 4}, v{t0 + 3}, 1, s43")
    A(f"v_xor_b32 v{t0 + 5}, 1, v{t0 + 4}")
    A(f"v_mul_u32_u24 v{t0 + 4}, {STREAM}, v{t0 + 4}"); A(f"v_mul_u32_u24 v{t0 + 5}, {STREAM}, v{t0 + 5}")
    A(f"v_lshl_add_u32 v{vBO}, v{t0 + 2}, 4, v{t0 + 4}"); A(f"v_lshl_add_u32 v{vBO + 1}, v{t0 + 2}, 4, v{t0 + 5}")
    A(f"s_mov_b32 s10, {32 * STREAM}"); A("s_mov_b32 s11, 0x20000"); A(f"s_mov_b32 s{sBO}, 0")
    bi = 0
    while bstream[bi].earliest < 0:
        E.emit(bstream[bi]); bi += 1
    if cfg.prefetch_code:
        A("s_getpc_b64 s[30:31]")
        A("Lm_pc:")
        A("s_lshr_b32 s43, s2, 3"); A("s_lshl_b32 s43, s43, 12")
        A(f"v_lshl_add_u32 v{t0 + 4}, v0, 4, s43")
        A(f"v_min_u32 v{t0 + 4}, Lm_end-Lm_pc-16, v{t0 + 4}")
        A(f"v_and_b32 v{t0 + 4}, 0xfffffff0, v{t0 + 4}")
        pf = Op(f"global_load_dword v{vE}, v{t0 + 4}, s[30:31]", "G", wr=[f"v{vE}"])
        E.emit(pf)
    A(f"v_mul_u32_u24 v{t0 + 4}, {PLB}, v{t0 + 1}")
    A(f"v_mul_u32_u24 v{t0 + 5}, 96, v{t0}")
    A(f"v_add_u32 v{vWB}, v{t0 + 4}, v{t0 + 5}"); A(f"v_add_u32 v{vWB + 1}, {3 * US}, v{vWB}")
    A(f"v_and_b32 v{t0 + 4}, 15, v0")
    A(f"v_bfe_u32 v{t0 + 5}, v0, 4, 2")
    A(f"v_mul_u32_u24 v{t0 + 6}, {PLB}, v{t0 + 5}")
    A(f"v_mul_u32_u24 v{t0 + 7}, 160, v{t0 + 4}")
    A("s_lshl_b32 s43, s45, 8")
    A(f"v_add3_u32 v{vRM}, v{t0 + 6}, v{t0 + 7}, s43"); A(f"v_add_u32 v{vRM + 1}, {3 * US}, v{vRM}")
    A("s_xor_b32 s43, s45, 1"); A("s_mul_i32 s43, s43, 2560")
    A(f"v_lshl_add_u32 v{t0 + 6}, v{t0 + 4}, 4, v{t0 + 6}")
    A(f"v_add_u32 v{vRS}, s43, v{t0 + 6}"); A(f"v_add_u32 v{vRS + 1}, {3 * US}, v{vRS}")
    A("s_add_u32 s12, s12, s42"); A("s_addc_u32 s13, s13, 0")
    A("s_add_u32 s14, s46, 1000"); A("s_lshl_b32 s14, s14, 10"); A("s_sub_u32 s14, s14, 512"); A("s_mov_b32 s15, 0x20000")
    A(f"v_lshlrev_b32 v{t0 + 6}, 5, v{t0 + 3}"); A(f"v_lshl_add_u32 v{t0 + 6}, v{t0 + 5}, 3, v{t0 + 6}")
    A("s_mul_i32 s43, s45, 528"); A("s_add_u32 s43, s43, s46"); A("s_lshl_b32 s43, s43, 10")
    A("s_lshl_b32 s47, s41, 7"); A("s_add_u32 s43, s43, s47")
    A(f"v_mul_u32_u24 v{t0 + 7}, {30 * 1024}, v{t0 + 4}")
    A(f"v_add3_u32 v{vOM}, v{t0 + 6}, v{t0 + 7}, s43")
    A("s_add_u32 s43, s46, 480"); A("s_lshl_b32 s43, s43, 10"); A("s_add_u32 s43, s43, s47")
    A("s_lshl_b32 s47, s45, 2"); A("s_add_u32 s43, s43, s47")
    A(f"v_mul_u32_u24 v{t0 + 7}, {3 * 1024}, v{t0 + 4}")
    A(f"v_add3_u32 v{vOS}, v{t0 + 6}, v{t0 + 7}, s43")
    for i in range(8):
        A(f"s_mov_b32 s{sST + i}, {i * 4096}")
    LOG2E = 1.4426950408889634
    for sr, val in ((sM25, -2.5), (sM15, -1.5), (sM23, -2.0 / 3.0), (sCF, -2 * LOG2E), (sCG, -LOG2E), (sCL, 30.0)):
        A(f"s_mov_b32 s{sr}, {f2u(val):#x}")
    A(f"s_sub_u32 s{sHALF}, 0, s45"); A(f"s_mov_b32 s{sHALF + 1}, s{sHALF}")
    def xready(o):
        return all(a.pos is not None for a in o.after)
    sv = cfg.age_vm; cfg.age_vm = 10**9
    while xi < len(xstream) and xready(xstream[xi]):
        E.emit(xstream[xi]); xi += 1
    for o in tstreams[0]:
        E.emit(o)
    cfg.age_vm = sv
    vi = 0
    while vstream[vi].earliest < 0:
        E.emit(vstream[vi]); vi += 1
    stamp(4)

    tstream = [o for ts in tstreams[1:] for o in ts]
    streams = {"v": [vstream, vi], "b": [bstream, bi], "x": [xstream, xi], "t": [tstream, 0], "e": [estream, 0]}

    def head(k):
        lst, i = streams[k]
        return lst[i] if i < len(lst) else None

    def pop(k):
        E.emit(head(k)); streams[k][1] += 1

    def force(op):
        for a in op.after:
            if a.pos is None:
                for k in streams:
                    lst, i = streams[k]
                    if a in lst[i:]:
                        while a.pos is None:
                            force(head(k)); pop(k); E.stats["over"] += 1
                        break
                else:
                    raise RuntimeError("dep not found " + a.txt)

    def ready(op, t):
        if op is None or op.earliest > t:
            return False
        if any(a.pos is None for a in op.after):
            return False
        if E.hazard(op) > 0:
            return False
        av, al = E.youngest_needed_age(op)
        if av is not None and av < cfg.age_vm:
            return False
        if al is not None and al < cfg.age_lgkm:
            return False
        return True

    def cost(op):
        v, l = E.need_wait(op)
        c = COST[op.kind] + (1 if (v is not None or l is not None) else 0)
        if op.kind == "B" and E.lg:
            c += 1
        return c

    gapstat = {}
    for t in range(NM):
        if cfg.stamps and t == step_start[chunks[4][2]]:
            stamp(5)
        E.emit(mf[t])
        n_before = E.n
        cap = 2
        nxt = mf[t + 1] if t + 1 < NM else None
        if nxt is not None:
            v, l = E.need_wait(nxt)
            if v is not None or l is not None:
                cap -= 1
        first = True
        while cap > 0:
            cands = []
            for pr, k in enumerate(("v", "b", "x", "t", "e")):
                op = head(k)
                if not ready(op, t):
                    continue
                if op.kind in ("R", "G", "S", "W") and not first:
                    continue
                c = cost(op)
                if c > cap:
                    continue
                if op.kind in ("R", "G", "S", "W") and c > COST[op.kind]:
                    continue
                if k in ("t", "e"):
                    dl = op.deadline if op.deadline is not None else 10**9
                    key = (3, 0 if (k == "e" and op.deadline is not None) else (1 if k == "t" else 2), dl)
                else:
                    key = (pr, 0, 0)
                cands.append((key, k, c))
            if not cands:
                break
            cands.sort()
            _, k, c = cands[0]
            pop(k); cap -= c; first = False
        again = True
        while again:
            again = False
            for k in ("e", "t", "b", "v"):
                op = head(k)
                if op is not None and op.deadline is not None and op.deadline <= t:
                    force(op); pop(k); E.stats["over"] += 1; again = True
        g = E.n - n_before
        gapstat[g] = gapstat.get(g, 0) + 1
    stamp(6)
    rem = {k: len(streams[k][0]) - streams[k][1] for k in streams}
    for k in ("v", "b", "x", "t"):
        assert rem[k] == 0, rem
    while head("e") is not None:
        pop("e")
    if cfg.stamps:
        A("s_waitcnt vmcnt(0)")
        A(f"s_memrealtime s[{sSTAMP + 2}:{sSTAMP + 3}]"); stamp(3)
        A("s_load_dwordx2 s[40:41], s[0:1], 32")
        A("s_waitcnt lgkmcnt(0)")
        A("s_add_u32 s40, s40, 0x8000000"); A("s_addc_u32 s41, s41, 0")
        A("s_lshl_b32 s3, s2, 6"); A("v_mov_b32 v2, s3")
        for i in range(16):
            A(f"v_mov_b32 v{4 + i}, s{sSTAMP + i}")
        A("v_cmp_eq_u32 vcc, 0, v0"); A("s_and_saveexec_b64 s[30:31], vcc"); A("s_cbranch_execz Lm_end")
        for i in range(4):
            A(f"global_store_dwordx4 v2, v[{4 + 4 * i}:{7 + 4 * i}], s[40:41] offset:{16 * i}")
    A("Lm_end:")
    A("s_endpgm")
    sys.stderr.write(f"mfma {NM} instrs {E.n} stats {E.stats} gaps {sorted(gapstat.items())} tail_epi {rem['e']} vgpr {vp[0]}\n")
    return E.out


def kd(name, vgpr, acc):
    return [".p2align 6", f".amdhsa_kernel {name}", f"  .amdhsa_next_free_vgpr {vgpr}", "  .amdhsa_next_free_sgpr 96",
            f"  .amdhsa_accum_offset {acc}", "  .amdhsa_group_segment_fixed_size 0", "  .amdhsa_kernarg_size 40",
            "  .amdhsa_user_sgpr_count 2", "  .amdhsa_user_sgpr_kernarg_segment_ptr 1",
            "  .amdhsa_system_sgpr_workgroup_id_x 1", ".end_amdhsa_kernel"]


def generate(cfg):
    L = ["; dilated causal conv (15 taps) + tanh*sigmoid gate, F(3,3) Toom-Cook over the taps, bf16 MFMA (generated by hand-written script)",
         f"; @launch kernel={PREP} grid=(160,1,1) block=(256,1,1) lds=0",
         f"; @launch kernel={KN} grid=(256,1,1) block=(256,1,1) lds={6 * US}",
         '.amdgcn_target "amdgcn-amd-amdhsa--gfx950"', ".text"]
    L += gen_prep(cfg)
    L += gen_main(cfg)
    L += ['.section .rodata,"a"'] + kd(PREP, 104, 104) + kd(KN, 512, 256)
    return "\n".join(L) + "\n"


if __name__ == "__main__":
    ap = argparse.ArgumentParser()
    ap.add_argument("out")
    ap.add_argument("--set", action="append", default=[])
    a = ap.parse_args()
    cfg = Cfg()
    for kv in a.set:
        k, v = kv.split("=")
        setattr(cfg, k, eval(v))
    open(a.out, "w").write(generate(cfg))
```

```python
import sys, struct, math, argparse

KN = "standalone__autoregressive_conv_wavernn__speech_kernel"
PREP = "wprep_kernel"


def f2u(x):
    return struct.unpack("<I", struct.pack("<f", x))[0]


PL = 181
PLB = PL * 16
US = 8 * PLB
STREAM = 200 * 1024
MB = 10


class Cfg:
    p1 = ["a", "c", "b"]
    p2 = ["0", "i"]
    look_v = 28
    look_b = 100
    nfifo = 8
    nraw = 12
    stamps = False
    age_lgkm = 10
    age_vm = 56
    noise = 0.0
    prefetch_code = True
    bar_delay = 8
    naive = False


def step_list(cfg):
    st = []
    for ph in (cfg.p1, cfg.p2):
        for c in range(4):
            for k in ph:
                for kk in range(2):
                    st.append((k, c, kk))
    return st


def regs(prefix, base, n):
    return [f"{prefix}{base + i}" for i in range(n)]


def rng(prefix, base, n):
    return f"{prefix}[{base}:{base + n - 1}]" if n > 1 else f"{prefix}{base}"


class Op:
    __slots__ = ("txt", "kind", "rd", "wr", "earliest", "deadline", "after", "pos", "tpos", "srcc", "minage")

    def __init__(s, txt, kind, rd=(), wr=(), earliest=0, deadline=None, after=(), srcc=(), minage=0):
        s.txt = txt; s.kind = kind; s.rd = list(rd); s.wr = list(wr)
        s.earliest = earliest; s.deadline = deadline; s.after = list(after)
        s.pos = None; s.tpos = None; s.srcc = list(srcc); s.minage = minage


COST = {"V": 1, "T": 2, "R": 1, "W": 2, "G": 2, "S": 2, "A": 1, "B": 1, "X": 1, "N": 1}


class Emitter:
    def __init__(s, cfg):
        s.cfg = cfg
        s.out = []
        s.n = 0
        s.t = -1
        s.vm = []
        s.lg = []
        s.pend = {}
        s.lastw = {}
        s.lastc = {}
        s.stats = {"wait": 0, "nop": 0, "over": 0}

    def raw(s, txt, states=1):
        s.out.append(txt)
        s.n += states

    def need_wait(s, op):
        v = l = None
        for r in op.rd + op.wr:
            p = s.pend.get(r)
            if p is None:
                continue
            if p.kind == "G":
                i = s.vm.index(p); v = i if v is None else max(v, i)
            else:
                i = s.lg.index(p); l = i if l is None else max(l, i)
        return v, l

    def youngest_needed_age(s, op):
        v, l = s.need_wait(op)
        av = None if v is None else s.t - s.vm[v].tpos
        al = None if l is None else s.t - s.lg[l].tpos
        return av, al

    def retire(s, q, upto):
        for p in q[:upto + 1]:
            for r in p.wr:
                if s.pend.get(r) is p:
                    del s.pend[r]
        del q[:upto + 1]

    def emit_wait(s, v, l, extend=True):
        if extend:
            for i, p in enumerate(s.vm):
                if s.t - p.tpos >= s.cfg.age_vm and (v is None or i > v):
                    v = i
            for i, p in enumerate(s.lg):
                if s.t - p.tpos >= s.cfg.age_lgkm and (l is None or i > l):
                    l = i
        parts = []
        if v is not None:
            nv = len(s.vm) - 1 - v
            assert nv <= 63
            parts.append(f"vmcnt({nv})"); s.retire(s.vm, v)
        if l is not None:
            nl = len(s.lg) - 1 - l
            assert nl <= 15, nl
            parts.append(f"lgkmcnt({nl})"); s.retire(s.lg, l)
        if parts:
            s.raw("s_waitcnt " + " ".join(parts)); s.stats["wait"] += 1

    def wait_all(s, vm=True, lg=True):
        s.emit_wait(len(s.vm) - 1 if (vm and s.vm) else None, len(s.lg) - 1 if (lg and s.lg) else None, extend=False)

    def hazard(s, op):
        need = 0
        for r in op.rd + op.wr:
            w = s.lastw.get(r)
            if w is not None:
                k, n = w
                d = s.n - n - 1
                req = 0
                if k == "M":
                    if op.kind == "M":
                        req = 0 if (r in op.srcc or (r in op.wr and r not in op.rd)) else 8
                        if r in op.wr and r not in op.srcc:
                            req = 8
                    else:
                        req = 8
                elif k in ("V", "T"):
                    if op.kind == "M" and r in op.rd:
                        req = 2
                    elif k == "T" and op.kind == "V" and r in op.rd:
                        req = 1
                    elif k == "T" and op.kind in ("W", "S") and r in op.rd:
                        req = 1
                need = max(need, req - d)
        if op.kind in ("V", "T"):
            for r in op.wr:
                n = s.lastc.get(r)
                if n is not None:
                    need = max(need, 3 - (s.n - n - 1))
        return need

    def emit(s, op):
        for a in op.after:
            assert a.pos is not None, (op.txt, a.txt)
        v, l = s.need_wait(op)
        if v is not None or l is not None:
            s.emit_wait(v, l)
        h = s.hazard(op)
        if h > 0:
            s.raw(f"s_nop {h - 1}", h); s.stats["nop"] += 1
        if op.kind == "B":
            s.wait_all(vm=False)
        if op.kind in ("R", "W") and len(s.lg) >= 15:
            s.emit_wait(None, 0)
        if op.kind in ("G", "S") and len(s.vm) >= 60:
            s.emit_wait(0, None)
        op.pos = s.n
        if op.kind == "M":
            s.t += 1
            for r in op.srcc:
                s.lastc[r] = s.n
        op.tpos = s.t
        for r in op.wr:
            s.lastw[r] = (op.kind, s.n)
        if op.kind in ("G", "S"):
            s.vm.append(op)
        if op.kind in ("R", "W"):
            s.lg.append(op)
        if op.kind in ("G", "R"):
            for r in op.wr:
                s.pend[r] = op
        s.raw(op.txt)


class Pool:
    def __init__(s, lst):
        s.free = list(lst)

    def get(s):
        return s.free.pop(0)

    def put(s, r):
        s.free.append(r)


def gen_prep(cfg):
    st = step_list(cfg)
    L = []; A = L.append
    A(f".globl {PREP}"); A(".p2align 8"); A(f".type {PREP},@function"); A(f"{PREP}:")
    A("s_cmp_ge_u32 s2, 160"); A("s_cbranch_scc1 Lp_done")
    A("s_load_dwordx2 s[4:5], s[0:1], 8")
    A("s_load_dwordx2 s[8:9], s[0:1], 32")
    A("s_and_b32 s12, s2, 31")
    A("s_lshr_b32 s13, s2, 5")
    A("s_mul_i32 s14, s13, 786432")
    A("s_lshl_b32 s15, s12, 13")
    A("s_add_u32 s14, s14, s15")
    for i in range(6):
        A(f"s_add_u32 s{16 + i}, s14, {(i // 2) * 262144 + (i % 2) * 4096}")
    A("v_lshlrev_b32 v1, 2, v0")
    A("s_mov_b32 s6, 3932160"); A("s_mov_b32 s7, 0x20000")
    A(f"s_mov_b32 s10, {32 * STREAM}"); A("s_mov_b32 s11, 0x20000")
    A("s_waitcnt lgkmcnt(0)")
    for dd in range(8):
        for tap in range(3):
            A(f"buffer_load_dword v{8 + tap * 8 + dd}, v1, s[4:7], s{16 + tap * 2 + dd // 4} offen offset:{(dd % 4) * 1024}")
    A("v_and_b32 v2, 127, v0")
    A("v_lshrrev_b32 v3, 3, v2"); A("v_lshlrev_b32 v3, 1, v3")
    A("v_and_b32 v4, 1, v2"); A("v_add_u32 v3, v3, v4")
    A(f"v_mul_u32_u24 v3, {STREAM}, v3")
    A("v_bfe_u32 v4, v2, 1, 2"); A("v_lshlrev_b32 v4, 6, v4")
    A("v_lshrrev_b32 v5, 7, v0"); A("v_lshlrev_b32 v5, 5, v5")
    A("v_add3_u32 v3, v3, v4, v5")
    A("s_lshr_b32 s22, s12, 3")
    A("s_bfe_u32 s23, s12, 0x10002")
    A("s_and_b32 s30, s12, 3"); A("s_lshl_b32 s30, s30, 8")
    A("s_lshl_b32 s31, s13, 10"); A("s_add_u32 s30, s30, s31")
    A("s_mul_i32 s31, s23, 5120"); A("s_add_u32 s30, s30, s31")
    prods = ["a", "c", "b", "0", "i"]
    for i, k in enumerate(prods):
        base = st.index((k, 0, 0)); mul = st.index((k, 1, 0)) - base
        for c in range(4):
            for kk in range(2):
                assert st.index((k, c, kk)) == base + mul * c + kk
        A(f"s_mul_i32 s31, s22, {mul * 5120}")
        A(f"s_add_u32 s31, s31, {base * 5120}")
        A(f"s_add_u32 s{24 + i}, s30, s31")
    A(f"s_mov_b32 s32, {f2u(-2.0 / 3.0):#x}"); A(f"s_mov_b32 s33, {f2u(1.0 / 3.0):#x}"); A(f"s_mov_b32 s34, {f2u(-2.0 / 9.0):#x}")
    A("s_mov_b32 s35, 0x05040100"); A("s_mov_b32 s36, 0x07060302"); A(f"s_mov_b32 s37, {f2u(0.25):#x}")
    A("s_waitcnt vmcnt(0)")
    o = lambda p, par, w: 64 + (p * 2 + par) * 4 + w
    for w in range(4):
        for par in range(2):
            for e in range(2):
                dd = 2 * w + e
                t = 40 + e * 8
                for tap in range(3):
                    if par == 0:
                        A(f"v_lshlrev_b32 v{t + tap}, 16, v{8 + tap * 8 + dd}")
                    else:
                        A(f"v_and_b32 v{t + tap}, 0xffff0000, v{8 + tap * 8 + dd}")
                A(f"v_fma_f32 v{t + 3}, v{t + 1}, 0.5, v{t}")
                A(f"v_fma_f32 v{t + 3}, v{t + 2}, s37, v{t + 3}")
                A(f"v_mul_f32 v{t + 3}, s32, v{t + 3}")
                A(f"v_fma_f32 v{t + 4}, v{t + 1}, 2.0, v{t}")
                A(f"v_fma_f32 v{t + 4}, v{t + 2}, 4.0, v{t + 4}")
                A(f"v_mul_f32 v{t + 4}, s33, v{t + 4}")
                A(f"v_sub_f32 v{t + 5}, v{t}, v{t + 1}")
                A(f"v_add_f32 v{t + 5}, v{t + 5}, v{t + 2}")
                A(f"v_mul_f32 v{t + 5}, s34, v{t + 5}")
            for p in range(3):
                A(f"v_cvt_pk_bf16_f32 v{o(p, par, w)}, v{43 + p}, v{51 + p}")
            A(f"v_perm_b32 v{o(3, par, w)}, v{8 + 2 * w + 1}, v{8 + 2 * w}, s{35 + par}")
            A(f"v_perm_b32 v{o(4, par, w)}, v{24 + 2 * w + 1}, v{24 + 2 * w}, s{35 + par}")
    for p in range(5):
        for par in range(2):
            b = o(p, par, 0)
            A(f"buffer_store_dwordx4 v[{b}:{b + 3}], v3, s[8:11], s{24 + p} offen offset:{par * 16}")
    A("Lp_done:")
    A("s_endpgm")
    return L


def gen_main(cfg):
    st = step_list(cfg)
    nst = len(st)
    E = Emitter(cfg)
    A = E.raw

    vp = [1]
    def valloc(n, align=1):
        while vp[0] % align:
            vp[0] += 1
        b = vp[0]; vp[0] += n
        assert vp[0] <= 256, vp[0]
        return b
    vXO = valloc(6)
    vBO = valloc(2)
    vWB = valloc(2)
    vRM = valloc(2); vRS = valloc(2)
    vOM = valloc(1); vOS = valloc(1)
    vACCB = valloc(84, 4)
    vFIFO = valloc(4 * cfg.nfifo, 4)
    vRAW = valloc(4 * cfg.nraw, 4)
    vOUT = valloc(12, 4)
    NT = 30
    vT = valloc(NT)
    NE = 16
    vE = valloc(NE, 2)
    aA, aC, aB = 0, 84, 168
    accreg = {"a": ("a", aA), "0": ("a", aA), "c": ("a", aC), "i": ("a", aC), "b": ("v", vACCB)}
    sX, sU, sO = 4, 8, 12
    sBO = 16
    sM25, sM15, sM23, sCF, sCG, sCL = 17, 18, 19, 24, 25, 26
    sHALF = 28
    sST = 32
    sSTAMP = 48

    def stamp(i):
        if cfg.stamps:
            A(f"s_memtime s[{sSTAMP + 2 * i}:{sSTAMP + 2 * i + 1}]")

    A(f".globl {KN}"); A(".p2align 8"); A(f".type {KN},@function"); A(f"{KN}:")
    A("s_cmp_lt_u32 s2, 256"); A("s_cbranch_scc1 Lm_go"); A("s_endpgm"); A("Lm_go:")
    A("s_load_dwordx2 s[4:5], s[0:1], 0")
    A("s_load_dwordx2 s[12:13], s[0:1], 16")
    A("s_load_dwordx2 s[8:9], s[0:1], 32")
    if cfg.stamps:
        A(f"s_memrealtime s[{sSTAMP}:{sSTAMP + 1}]"); stamp(2)
    A("s_and_b32 s40, s2, 7"); A("s_lshr_b32 s41, s2, 3")
    A("s_lshl_b32 s40, s40, 3"); A("s_lshr_b32 s42, s41, 2"); A("s_add_u32 s40, s40, s42")
    A("s_and_b32 s41, s41, 3")
    A("s_lshr_b32 s42, s40, 5")
    A("s_bfe_u32 s43, s40, 0x10004")
    A("s_bfe_u32 s44, s40, 0x30001")
    A("s_and_b32 s45, s40, 1")
    A("s_mul_i32 s42, s42, 8192000"); A("s_lshl_b32 s43, s43, 9"); A("s_add_u32 s42, s42, s43")
    A("s_mul_i32 s46, s44, 1000")
    A("s_mul_i32 s47, s45, 480"); A("s_add_u32 s47, s47, s46"); A("s_sub_u32 s47, s47, 14")
    A("s_lshl_b32 s47, s47, 10")
    t0 = vT
    A(f"v_lshrrev_b32 v{t0}, 3, v0"); A(f"v_min_u32 v{t0}, 29, v{t0}")
    A(f"v_and_b32 v{t0 + 1}, 7, v0")
    A(f"v_mul_u32_u24 v{t0 + 2}, {18 * 1024}, v{t0}")
    A(f"v_lshl_add_u32 v{t0 + 2}, v{t0 + 1}, 4, v{t0 + 2}")
    A(f"v_add_u32 v{vXO}, s47, v{t0 + 2}")
    RG = [0, 2, 6, 10, 14, 18]
    for i in range(1, 6):
        A(f"v_add_u32 v{vXO + i}, {RG[i] * 1024}, v{vXO}")
    A("s_sub_u32 s6, 16384000, s42"); A("s_mov_b32 s7, 0x20000")
    A("s_waitcnt lgkmcnt(0)")
    A("s_add_u32 s4, s4, s42"); A("s_addc_u32 s5, s5, 0")

    def xaddr(rho, c):
        gi = max(i for i in range(6) if RG[i] <= rho)
        return vXO + gi, (rho - RG[gi]) * 1024 + c * 128

    mf = []
    frags = []
    acc_touch = {}
    buse = {}
    started = set()
    step_start = []
    for si, (k, c, kk) in enumerate(st):
        step_start.append(len(mf))
        pre, base = accreg[k]
        seq = []
        for j in range(MB + 4):
            seq.append(("m", j))
            if 4 <= j <= 8:
                seq.append(("s", j - 4))
        for (fk, j) in seq:
            fr = vFIFO + 4 * (len(frags) % cfg.nfifo)
            first = len(mf)
            if fk == "m":
                lst = [(a, sl, (j - a) * 2 + sl) for a in range(max(0, j - MB + 1), min(4, j) + 1) for sl in range(2)]
            else:
                lst = [(j, 0, 2 * MB)]
            for (a, sl, u) in lst:
                br = aB + ((si % 2) * 10 + a * 2 + sl) * 4
                d = base + 4 * u
                key = (pre, base, u)
                D = rng(pre, d, 4)
                fresh = key not in started
                started.add(key)
                C = "0" if fresh else D
                op = Op(f"v_mfma_f32_16x16x32_bf16 {D}, {rng('a', br, 4)}, {rng('v', fr, 4)}, {C}", "M",
                        rd=regs("a", br, 4) + regs("v", fr, 4) + ([] if fresh else regs(pre, d, 4)),
                        wr=regs(pre, d, 4), srcc=([] if fresh else regs(pre, d, 4)))
                acc_touch.setdefault((k, u), []).append(len(mf))
                bu = buse.setdefault((si, a, sl), [len(mf), len(mf)]); bu[1] = len(mf)
                mf.append(op)
            frags.append((si, fk, j, first, len(mf) - 1, fr))
    NM = len(mf)
    step_start.append(NM)
    chunks = []
    si = 0
    for ph in (cfg.p1, cfg.p2):
        for c in range(4):
            chunks.append((ph, c, si, 2 * len(ph))); si += 2 * len(ph)
    chunk_of_step = {}
    for ci, (ph, c, s0, ns) in enumerate(chunks):
        for s_ in range(s0, s0 + ns):
            chunk_of_step[s_] = ci

    bstream = []
    nld = 0
    for si in range(nst):
        for a in range(5):
            t = si * 5 + a
            if t % 4 == 0 and t > 0:
                bstream.append(Op(f"s_add_u32 s{sBO}, s{sBO}, 4096", "A", earliest=bstream[-1].earliest))
            for sl in range(2):
                br = aB + ((si % 2) * 10 + a * 2 + sl) * 4
                first = buse[(si, a, sl)][0]
                prev = buse[(si - 2, a, sl)][1] if si >= 2 else -1
                tgt = step_start[si] - cfg.look_b + ((a * 2 + sl) * 105) // 10 - 5
                e = max(prev, min(tgt, first - 60))
                bstream.append(Op(f"buffer_load_dwordx4 {rng('a', br, 4)}, v{vBO + sl}, s[{sU}:{sU + 3}], s{sBO} offen offset:{(t % 4) * 1024}",
                                  "G", wr=regs("a", br, 4), earliest=e, deadline=first - 30))

    barrier = [Op("s_barrier", "B") for _ in chunks]
    rawpool_regs = [vRAW + 4 * i for i in range(cfg.nraw)]
    raw_free = [(r, None) for r in rawpool_regs]
    extra_raw = [(vACCB + 4 * i, None) for i in range(18 - cfg.nraw + 6)] if True else []
    xstream = []
    tstreams = []
    T = Pool([vT + i for i in range(NT)])

    def V(txt, rd, wr, lst):
        op = Op(txt, "V", rd=[f"v{r}" for r in rd], wr=[f"v{r}" for r in wr]); lst.append(op); return op

    for ci, (ph, c, s0, ns) in enumerate(chunks):
        ts = []
        setb = ci % 2
        needs_edge = ("0" in ph) or ("i" in ph)
        rows = {}
        def load_row(rho):
            if ci == 0 and extra_raw:
                cand = extra_raw.pop(0); tmp = True
            else:
                cand = raw_free.pop(0); tmp = False
            r, last = cand
            va, off = xaddr(rho, c)
            op = Op(f"buffer_load_dwordx4 {rng('v', r, 4)}, v{va}, s[{sX}:{sX + 3}], 0 offen offset:{off}", "G",
                    wr=regs("v", r, 4), after=([last] if last else []))
            op.minage = ci
            xstream.append(op)
            rows[rho] = (r, op, tmp)
        def free_row(rho, lastop):
            r, op, tmp = rows.pop(rho)
            if not tmp:
                raw_free.append((r, lastop))
        def unpack(rho, w, hi):
            r, lop, _ = rows[rho]
            t = T.get()
            if hi:
                o = V(f"v_and_b32 v{t}, 0xffff0000, v{r + w}", [r + w], [t], ts)
            else:
                o = V(f"v_lshlrev_b32 v{t}, 16, v{r + w}", [r + w], [t], ts)
            o.after.append(lop)
            return t
        carry = {}
        for n in range(6):
            newrows = [3 * n + 2, 3 * n + 3, 3 * n + 4] if needs_edge else [3 * n + 1, 3 * n + 2, 3 * n + 3]
            if needs_edge and n == 0:
                newrows = [0, 1] + newrows
            for rho in newrows:
                load_row(rho)
            for w in range(4):
                res = {k: [None, None] for k in ph}
                for hi in range(2):
                    if needs_edge:
                        if n == 0:
                            carry[(w, hi)] = (unpack(0, w, hi), unpack(1, w, hi))
                        u0, u1 = carry[(w, hi)]
                        u2 = unpack(3 * n + 2, w, hi); u3 = unpack(3 * n + 3, w, hi); u4 = unpack(3 * n + 4, w, hi)
                    else:
                        u1 = unpack(3 * n + 1, w, hi); u2 = unpack(3 * n + 2, w, hi); u3 = unpack(3 * n + 3, w, hi)
                    s1 = T.get(); s2 = T.get()
                    V(f"v_add_f32 v{s1}, v{u1}, v{u2}", [u1, u2], [s1], ts)
                    V(f"v_add_f32 v{s2}, v{u2}, v{u3}", [u2, u3], [s2], ts)
                    if "b" in ph:
                        tb = T.get()
                        V(f"v_add_f32 v{tb}, v{u1}, v{u3}", [u1, u3], [tb], ts)
                        V(f"v_fmac_f32 v{tb}, s{sM25}, v{u2}", [u2, tb], [tb], ts)
                        res["b"][hi] = tb
                    if needs_edge:
                        V(f"v_add_f32 v{u0}, v{u0}, v{u3}", [u0, u3], [u0], ts)
                        V(f"v_add_f32 v{u1}, v{u1}, v{u4}", [u1, u4], [u1], ts)
                        V(f"v_fmac_f32 v{u0}, s{sM15}, v{s1}", [u0, s1], [u0], ts)
                        V(f"v_fmac_f32 v{u1}, s{sM15}, v{s2}", [u1, s2], [u1], ts)
                        res["0"][hi] = u0; res["i"][hi] = u1
                        carry[(w, hi)] = (u3, u4)
                        T.put(u2); T.put(s1); T.put(s2)
                        assert "a" not in ph
                    else:
                        V(f"v_fma_f32 v{u2}, v{s1}, -2.0, v{s2}", [s1, s2], [u2], ts)
                        V(f"v_fmac_f32 v{s2}, -0.5, v{s1}", [s1, s2], [s2], ts)
                        res["a"][hi] = u2; res["c"][hi] = s2
                        T.put(u1); T.put(u3); T.put(s1)
                for pi, k in enumerate(ph):
                    lo, hi_ = res[k]
                    V(f"v_cvt_pk_bf16_f32 v{vOUT + 4 * pi + w}, v{lo}, v{hi_}", [lo, hi_], [vOUT + 4 * pi + w], ts)
                    T.put(lo); T.put(hi_)
            last = ts[-1]
            for rho in newrows:
                free_row(rho, last)
            for pi, k in enumerate(ph):
                op = Op(f"ds_write_b128 v{vWB + setb}, {rng('v', vOUT + 4 * pi, 4)} offset:{pi * US + n * 16}", "W",
                        rd=regs("v", vOUT + 4 * pi, 4), after=([barrier[ci - 1]] if ci >= 1 else []))
                ts.append(op)
        if needs_edge:
            for v_ in carry.values():
                T.put(v_[0]); T.put(v_[1])
        barrier[ci].after = [ts[-1]]
        tstreams.append(ts)

    vstream = []
    bar_time = {}
    for fi, (si, fk, j, first, last, fr) in enumerate(frags):
        k, c, kk = st[si]
        ci = chunk_of_step[si]
        ph = chunks[ci][0]
        prev = frags[fi - cfg.nfifo][4] if fi >= cfg.nfifo else -1
        e = max(prev, first - cfg.look_v)
        if ci not in bar_time:
            be = (vstream[-1].earliest + cfg.bar_delay) if vstream else -1
            bar_time[ci] = be
            barrier[ci].earliest = be
            barrier[ci].deadline = be
            vstream.append(barrier[ci])
        base = (vRM if fk == "m" else vRS) + ci % 2
        off = ph.index(k) * US + kk * 4 * PLB + j * 16
        vstream.append(Op(f"ds_read_b128 {rng('v', fr, 4)}, v{base} offset:{off}", "R", wr=regs("v", fr, 4),
                          earliest=e, deadline=first - 6, after=[barrier[ci]]))

    lastp1 = 3
    for ci in range(1, 8):
        ts = tstreams[ci]
        t_lo = bar_time[ci - 1] + 1
        t_hi = bar_time[ci] - 12
        if ci == lastp1 + 1 and len(cfg.p1) == 3:
            t_hi = step_start[chunks[lastp1][2] + 3] + 50
        tot = sum(COST[o.kind] for o in ts); acc = 0
        for o in ts:
            o.earliest = t_lo + (acc * (t_hi - t_lo)) // tot
            acc += COST[o.kind]
            o.deadline = bar_time[ci]

    EP = Pool([vE + i for i in range(NE)])
    groups = []
    HZ = 9
    for u in range(2 * MB + 1):
        ready = max(acc_touch[("a", u)][-1], acc_touch[("c", u)][-1]) + HZ
        need = min(acc_touch[("0", u)][0], acc_touch[("i", u)][0]) - 2
        bt = acc_touch[("b", u)]
        wins = []
        edges = [(-10**9, bt[0])] + [(bt[i], bt[i + 1]) for i in range(len(bt) - 1)] + [(bt[-1], 10**9)]
        for (x, y) in edges[1:]:
            lo = max(x + HZ, ready); hi = min(y - 2, need)
            if hi - lo >= 20:
                wins.append((lo, hi))
        assert wins
        for i in range(4):
            lo, hi = wins[((u * 4 + i) * len(wins) * 2 // 8 + 0) % len(wins)] if False else wins[(u % 2 * 4 + i) * len(wins) // 8]
            groups.append((lo, hi, u, i))
    groups.sort()
    basis = []
    for (lo, hi, u, i) in groups:
        ra, rc, rb = aA + 4 * u + i, aC + 4 * u + i, vACCB + 4 * u + i
        x = EP.get(); y = EP.get(); s_ = EP.get()
        ops = [Op(f"v_accvgpr_read_b32 v{x}, a{ra}", "V", rd=[f"a{ra}"], wr=[f"v{x}"]),
               Op(f"v_accvgpr_read_b32 v{y}, a{rc}", "V", rd=[f"a{rc}"], wr=[f"v{y}"]),
               Op(f"v_add_f32 v{s_}, v{x}, v{y}", "V", rd=[f"v{x}", f"v{y}"], wr=[f"v{s_}"]),
               Op(f"v_add_f32 v{x}, v{x}, v{s_}", "V", rd=[f"v{x}", f"v{s_}"], wr=[f"v{x}"]),
               Op(f"v_add_f32 v{y}, v{y}, v{s_}", "V", rd=[f"v{y}", f"v{s_}"], wr=[f"v{y}"]),
               Op(f"v_fmac_f32 v{rb}, s{sM23}, v{s_}", "V", rd=[f"v{rb}", f"v{s_}"], wr=[f"v{rb}"]),
               Op(f"v_accvgpr_write_b32 a{ra}, v{x}", "V", rd=[f"v{x}"], wr=[f"a{ra}"]),
               Op(f"v_accvgpr_write_b32 a{rc}, v{y}", "V", rd=[f"v{y}"], wr=[f"a{rc}"])]
        for o in ops:
            o.earliest = lo; o.deadline = hi
        basis += ops
        EP.put(x); EP.put(y); EP.put(s_)
    for i in range(len(basis) - 2, -1, -1):
        basis[i].deadline = min(basis[i].deadline, basis[i + 1].deadline)
    for o in basis:
        assert o.earliest <= o.deadline, (o.txt, o.earliest, o.deadline)

    epi = []
    def epi_unit(yi, u, dst, earliest):
        ops = []
        def O(txt, kind, rd, wr):
            ops.append(Op(txt, kind, rd=rd, wr=wr, earliest=earliest))
        zb = [vACCB + 4 * u + i for i in range(4)]
        cs = [sCF, sCF, sCG, sCG]
        z = [EP.get() for _ in range(4)]
        if yi == 1:
            for i in range(4):
                O(f"v_mul_f32 v{zb[i]}, s{cs[i]}, v{zb[i]}", "V", [f"v{zb[i]}"], [f"v{zb[i]}"])
            for i in range(2):
                O(f"v_min_f32 v{z[i]}, -v{zb[i]}, s{sCL}", "V", [f"v{zb[i]}"], [f"v{z[i]}"])
            for i in range(2):
                O(f"v_exp_f32 v{z[i]}, v{z[i]}", "T", [f"v{z[i]}"], [f"v{z[i]}"])
            for i in range(2, 4):
                O(f"v_exp_f32 v{z[i]}, -v{zb[i]}", "T", [f"v{zb[i]}"], [f"v{z[i]}"])
        else:
            ab = (aA if yi == 0 else aC) + 4 * u
            for i in range(4):
                O(f"v_accvgpr_read_b32 v{z[i]}, a{ab + i}", "V", [f"a{ab + i}"], [f"v{z[i]}"])
            for i in range(4):
                O(f"v_fma_f32 v{z[i]}, v{z[i]}, s{cs[i]}, v{zb[i]}", "V", [f"v{z[i]}", f"v{zb[i]}"], [f"v{z[i]}"])
            for i in range(2):
                O(f"v_min_f32 v{z[i]}, s{sCL}, v{z[i]}", "V", [f"v{z[i]}"], [f"v{z[i]}"])
            for i in range(4):
                O(f"v_exp_f32 v{z[i]}, v{z[i]}", "T", [f"v{z[i]}"], [f"v{z[i]}"])
        p = [EP.get() for _ in range(2)]
        for i in range(2):
            O(f"v_add_f32 v{p[i]}, 1.0, v{z[i]}", "V", [f"v{z[i]}"], [f"v{p[i]}"])
        for i in range(2):
            O(f"v_fmac_f32 v{p[i]}, v{p[i]}, v{z[2 + i]}", "V", [f"v{p[i]}", f"v{z[2 + i]}"], [f"v{p[i]}"])
        for i in range(2):
            O(f"v_rcp_f32 v{p[i]}, v{p[i]}", "T", [f"v{p[i]}"], [f"v{p[i]}"])
        for i in range(2):
            O(f"v_fma_f32 v{p[i]}, -v{z[i]}, v{p[i]}, v{p[i]}", "V", [f"v{z[i]}", f"v{p[i]}"], [f"v{p[i]}"])
        O(f"v_cvt_pk_bf16_f32 v{dst}, v{p[0]}, v{p[1]}", "V", [f"v{p[0]}", f"v{p[1]}"], [f"v{dst}"])
        for r in z + p:
            EP.put(r)
        return ops
    stg = [vE + NE - 4, vE + NE - 2]
    for r in range(vE + NE - 4, vE + NE):
        EP.free.remove(r)
    pk = [EP.get(), EP.get()]
    basis_done = {}
    for gi, (lo, hi, u, i) in enumerate(groups):
        basis_done[u] = max(basis_done.get(u, 0), hi)
    cnt = 0
    for yi, k in ((1, "b"), (0, "0"), (2, "i")):
        items = []
        for m in range(MB + 1):
            us = [2 * m, 2 * m + 1] if m < MB else [2 * MB]
            e = max(max(acc_touch[(k, u)][-1], acc_touch[("b", u)][-1]) + HZ for u in us)
            items.append((e, m, us))
        items.sort()
        for (e, m, us) in items:
            sg = stg[cnt % 2]; cnt += 1
            if m < MB:
                epi += epi_unit(yi, us[0], pk[0], e)
                epi += epi_unit(yi, us[1], pk[1], e)
                epi.append(Op(f"v_cndmask_b32 v{sg}, v{pk[0]}, v{pk[1]}, s[{sHALF}:{sHALF + 1}]", "V", rd=[f"v{pk[0]}", f"v{pk[1]}"], wr=[f"v{sg}"], earliest=e))
                epi.append(Op(f"v_cndmask_b32 v{sg + 1}, v{pk[1]}, v{pk[0]}, s[{sHALF}:{sHALF + 1}]", "V", rd=[f"v{pk[0]}", f"v{pk[1]}"], wr=[f"v{sg + 1}"], earliest=e))
                row = 3 * m + yi
                epi.append(Op(f"buffer_store_dwordx2 v[{sg}:{sg + 1}], v{vOM}, s[{sO}:{sO + 3}], s{sST + row // 4} offen offset:{(row % 4) * 1024}", "S",
                              rd=[f"v{sg}", f"v{sg + 1}"], earliest=e))
            else:
                epi += epi_unit(yi, us[0], sg, e)
                epi.append(Op(f"buffer_store_dword v{sg}, v{vOS}, s[{sO}:{sO + 3}], 0 offen offset:{yi * 1024}", "S", rd=[f"v{sg}"], earliest=e))
    estream = basis + epi

    n0 = sum(1 for o in xstream if o.minage == 0)
    for o in xstream[:n0]:
        E.emit(o)
    xi = n0
    A(f"v_and_b32 v{t0 + 2}, 63, v0")
    A(f"v_lshrrev_b32 v{t0 + 3}, 6, v0")
    A("s_lshl_b32 s43, s41, 3"); A("s_add_u32 s43, s43, s45")
    A(f"v_lshl_add_u32 v{t0 + 4}, v{t0 + 3}, 1, s43")
    A(f"v_xor_b32 v{t0 + 5}, 1, v{t0 + 4}")
    A(f"v_mul_u32_u24 v{t0 + 4}, {STREAM}, v{t0 + 4}"); A(f"v_mul_u32_u24 v{t0 + 5}, {STREAM}, v{t0 + 5}")
    A(f"v_lshl_add_u32 v{vBO}, v{t0 + 2}, 4, v{t0 + 4}"); A(f"v_lshl_add_u32 v{vBO + 1}, v{t0 + 2}, 4, v{t0 + 5}")
    A(f"s_mov_b32 s10, {32 * STREAM}"); A("s_mov_b32 s11, 0x20000"); A(f"s_mov_b32 s{sBO}, 0")
    bi = 0
    while bstream[bi].earliest < 0:
        E.emit(bstream[bi]); bi += 1
    if cfg.prefetch_code:
        A("s_getpc_b64 s[30:31]")
        A("Lm_pc:")
        A("s_lshr_b32 s43, s2, 3"); A("s_lshl_b32 s43, s43, 12")
        A(f"v_lshl_add_u32 v{t0 + 4}, v0, 4, s43")
        A(f"v_min_u32 v{t0 + 4}, Lm_end-Lm_pc-16, v{t0 + 4}")
        A(f"v_and_b32 v{t0 + 4}, 0xfffffff0, v{t0 + 4}")
        pf = Op(f"global_load_dword v{vE}, v{t0 + 4}, s[30:31]", "G", wr=[f"v{vE}"])
        E.emit(pf)
    A(f"v_mul_u32_u24 v{t0 + 4}, {PLB}, v{t0 + 1}")
    A(f"v_mul_u32_u24 v{t0 + 5}, 96, v{t0}")
    A(f"v_add_u32 v{vWB}, v{t0 + 4}, v{t0 + 5}"); A(f"v_add_u32 v{vWB + 1}, {3 * US}, v{vWB}")
    A(f"v_and_b32 v{t0 + 4}, 15, v0")
    A(f"v_bfe_u32 v{t0 + 5}, v0, 4, 2")
    A(f"v_mul_u32_u24 v{t0 + 6}, {PLB}, v{t0 + 5}")
    A(f"v_mul_u32_u24 v{t0 + 7}, 160, v{t0 + 4}")
    A("s_lshl_b32 s43, s45, 8")
    A(f"v_add3_u32 v{vRM}, v{t0 + 6}, v{t0 + 7}, s43"); A(f"v_add_u32 v{vRM + 1}, {3 * US}, v{vRM}")
    A("s_xor_b32 s43, s45, 1"); A("s_mul_i32 s43, s43, 2560")
    A(f"v_lshl_add_u32 v{t0 + 6}, v{t0 + 4}, 4, v{t0 + 6}")
    A(f"v_add_u32 v{vRS}, s43, v{t0 + 6}"); A(f"v_add_u32 v{vRS + 1}, {3 * US}, v{vRS}")
    A("s_add_u32 s12, s12, s42"); A("s_addc_u32 s13, s13, 0")
    A("s_add_u32 s14, s46, 1000"); A("s_lshl_b32 s14, s14, 10"); A("s_sub_u32 s14, s14, 512"); A("s_mov_b32 s15, 0x20000")
    A(f"v_lshlrev_b32 v{t0 + 6}, 5, v{t0 + 3}"); A(f"v_lshl_add_u32 v{t0 + 6}, v{t0 + 5}, 3, v{t0 + 6}")
    A("s_mul_i32 s43, s45, 528"); A("s_add_u32 s43, s43, s46"); A("s_lshl_b32 s43, s43, 10")
    A("s_lshl_b32 s47, s41, 7"); A("s_add_u32 s43, s43, s47")
    A(f"v_mul_u32_u24 v{t0 + 7}, {30 * 1024}, v{t0 + 4}")
    A(f"v_add3_u32 v{vOM}, v{t0 + 6}, v{t0 + 7}, s43")
    A("s_add_u32 s43, s46, 480"); A("s_lshl_b32 s43, s43, 10"); A("s_add_u32 s43, s43, s47")
    A("s_lshl_b32 s47, s45, 2"); A("s_add_u32 s43, s43, s47")
    A(f"v_mul_u32_u24 v{t0 + 7}, {3 * 1024}, v{t0 + 4}")
    A(f"v_add3_u32 v{vOS}, v{t0 + 6}, v{t0 + 7}, s43")
    for i in range(8):
        A(f"s_mov_b32 s{sST + i}, {i * 4096}")
    LOG2E = 1.4426950408889634
    for sr, val in ((sM25, -2.5), (sM15, -1.5), (sM23, -2.0 / 3.0), (sCF, -2 * LOG2E), (sCG, -LOG2E), (sCL, 30.0)):
        A(f"s_mov_b32 s{sr}, {f2u(val):#x}")
    A(f"s_sub_u32 s{sHALF}, 0, s45"); A(f"s_mov_b32 s{sHALF + 1}, s{sHALF}")
    def xready(o):
        return all(a.pos is not None for a in o.after)
    sv = cfg.age_vm; cfg.age_vm = 10**9
    while xi < len(xstream) and xready(xstream[xi]):
        E.emit(xstream[xi]); xi += 1
    for o in tstreams[0]:
        E.emit(o)
    cfg.age_vm = sv
    vi = 0
    while vstream[vi].earliest < 0:
        E.emit(vstream[vi]); vi += 1
    stamp(4)

    tstream = [o for ts in tstreams[1:] for o in ts]
    streams = {"v": [vstream, vi], "b": [bstream, bi], "x": [xstream, xi], "t": [tstream, 0], "e": [estream, 0]}

    def head(k):
        lst, i = streams[k]
        return lst[i] if i < len(lst) else None

    def pop(k):
        E.emit(head(k)); streams[k][1] += 1

    def force(op):
        for a in op.after:
            if a.pos is None:
                for k in streams:
                    lst, i = streams[k]
                    if a in lst[i:]:
                        while a.pos is None:
                            force(head(k)); pop(k); E.stats["over"] += 1
                        break
                else:
                    raise RuntimeError("dep not found " + a.txt)

    def ready(op, t):
        if op is None or op.earliest > t:
            return False
        if any(a.pos is None for a in op.after):
            return False
        if E.hazard(op) > 0:
            return False
        av, al = E.youngest_needed_age(op)
        if av is not None and av < cfg.age_vm:
            return False
        if al is not None and al < cfg.age_lgkm:
            return False
        return True

    def cost(op):
        v, l = E.need_wait(op)
        c = COST[op.kind] + (1 if (v is not None or l is not None) else 0)
        if op.kind == "B" and E.lg:
            c += 1
        return c

    gapstat = {}
    for t in range(NM):
        if cfg.stamps and t in step_start and step_start.index(t) % 2 == 0 and t > 0:
            stamp(4 + step_start.index(t) // 2)
        E.emit(mf[t])
        n_before = E.n
        cap = 2
        nxt = mf[t + 1] if t + 1 < NM else None
        if nxt is not None:
            v, l = E.need_wait(nxt)
            if v is not None or l is not None:
                cap -= 1
        first = True
        while cap > 0:
            cands = []
            for pr, k in enumerate(("v", "b", "x", "t", "e")):
                op = head(k)
                if not ready(op, t):
                    continue
                if op.kind in ("R", "G", "S", "W") and not first:
                    continue
                c = cost(op)
                if c > cap:
                    continue
                if op.kind in ("R", "G", "S", "W") and c > COST[op.kind]:
                    continue
                if k in ("t", "e"):
                    dl = op.deadline if op.deadline is not None else 10**9
                    key = (3, 0 if (k == "e" and op.deadline is not None) else (1 if k == "t" else 2), dl)
                else:
                    key = (pr, 0, 0)
                cands.append((key, k, c))
            if not cands:
                break
            cands.sort()
            _, k, c = cands[0]
            pop(k); cap -= c; first = False
        again = True
        while again:
            again = False
            for k in ("e", "t", "b", "v"):
                op = head(k)
                if op is not None and op.deadline is not None and op.deadline <= t:
                    force(op); pop(k); E.stats["over"] += 1; again = True
        g = E.n - n_before
        gapstat[g] = gapstat.get(g, 0) + 1
    stamp(24)
    rem = {k: len(streams[k][0]) - streams[k][1] for k in streams}
    for k in ("v", "b", "x", "t"):
        assert rem[k] == 0, rem
    while head("e") is not None:
        pop("e")
    if cfg.stamps:
        A("s_waitcnt vmcnt(0)")
        A(f"s_memrealtime s[{sSTAMP + 2}:{sSTAMP + 3}]"); stamp(3)
        A("s_load_dwordx2 s[40:41], s[0:1], 32")
        A("s_waitcnt lgkmcnt(0)")
        A("s_add_u32 s40, s40, 0x8000000"); A("s_addc_u32 s41, s41, 0")
        A("s_lshl_b32 s3, s2, 8"); A("v_mov_b32 v2, s3")
        for i in range(52):
            A(f"v_mov_b32 v{4 + i}, s{sSTAMP + i}")
        A("v_cmp_eq_u32 vcc, 0, v0"); A("s_and_saveexec_b64 s[30:31], vcc"); A("s_cbranch_execz Lm_end")
        for i in range(13):
            A(f"global_store_dwordx4 v2, v[{4 + 4 * i}:{7 + 4 * i}], s[40:41] offset:{16 * i}")
    A("Lm_end:")
    A("s_endpgm")
    sys.stderr.write(f"mfma {NM} instrs {E.n} stats {E.stats} gaps {sorted(gapstat.items())} tail_epi {rem['e']} vgpr {vp[0]}\n")
    return E.out


def kd(name, vgpr, acc):
    return [".p2align 6", f".amdhsa_kernel {name}", f"  .amdhsa_next_free_vgpr {vgpr}", "  .amdhsa_next_free_sgpr 102",
            f"  .amdhsa_accum_offset {acc}", "  .amdhsa_group_segment_fixed_size 0", "  .amdhsa_kernarg_size 40",
            "  .amdhsa_user_sgpr_count 2", "  .amdhsa_user_sgpr_kernarg_segment_ptr 1",
            "  .amdhsa_system_sgpr_workgroup_id_x 1", ".end_amdhsa_kernel"]


def generate(cfg):
    L = ["; dilated causal conv (15 taps) + tanh*sigmoid gate, F(3,3) Toom-Cook over the taps, bf16 MFMA (generated by hand-written script)",
         f"; @launch kernel={PREP} grid=(160,1,1) block=(256,1,1) lds=0",
         f"; @launch kernel={KN} grid=(256,1,1) block=(256,1,1) lds={6 * US}",
         '.amdgcn_target "amdgcn-amd-amdhsa--gfx950"', ".text"]
    L += gen_prep(cfg)
    L += gen_main(cfg)
    L += ['.section .rodata,"a"'] + kd(PREP, 104, 104) + kd(KN, 512, 256)
    return "\n".join(L) + "\n"


if __name__ == "__main__":
    ap = argparse.ArgumentParser()
    ap.add_argument("out")
    ap.add_argument("--set", action="append", default=[])
    a = ap.parse_args()
    cfg = Cfg()
    for kv in a.set:
        k, v = kv.split("=")
        setattr(cfg, k, eval(v))
    open(a.out, "w").write(generate(cfg))
```

```python
import sys, argparse, math
from gen import Op, Emitter, Pool, COST, regs, rng, f2u, kd, KN

LOG2E = 1.4426950408889634
PL = 129; PLB = PL * 16; US = 8 * PLB
NFR = 216; STREAM = NFR * 1024
UBYTES = 32 * STREAM
FLAGOFF = UBYTES
MB = 8
P1 = ["pa", "ma", "pb", "mb"]; P2 = ["c", "0", "i"]
NG = {k: 4 for k in P1 + P2}; NG["i"] = 3


class Cfg:
    a = 1.09
    look_v = 26
    look_b = 70
    nfifo = 8
    nraw = 12
    stamps = False
    age_lgkm = 9
    age_vm = 44
    prefetch_code = True
    bar_delay = 7
    pk = True
    force_fallback = False
    poll_max = 400
    xcdmap = 0


def consts(cfg):
    a = cfg.a; c = 4 / LOG2E; k0 = LOG2E / 4; b = math.sqrt(k0) / a
    pts = {"0": 0.0, "pa": a, "ma": -a, "pb": b, "mb": -b, "c": c}
    f = {k: math.prod(p - q for kk, q in pts.items() if kk != k) for k, p in pts.items()}
    mua, mub = a, 1.0
    K = {"pa": LOG2E * mua / f["pa"], "ma": LOG2E * mua / f["ma"], "pb": LOG2E * mub / f["pb"], "mb": LOG2E * mub / f["mb"],
         "c": LOG2E * c / f["c"], "0": 4.0, "i": -4.0}
    return dict(a=a, b=b, c=c, k0=k0, k1=-(a * a + b * b), mua=mua, mub=mub, K=K)


def selfcheck(cfg):
    import random
    C = consts(cfg); a, b, c, k0, k1 = C["a"], C["b"], C["c"], C["k0"], C["k1"]; K = C["K"]
    d = [random.gauss(0, 1) for _ in range(7)]; g = [random.gauss(0, 1) for _ in range(4)]
    G = {s: d[s + 1] - c * d[s] for s in range(1, 5)}
    hA1, hA2 = G[3] - b * b * G[1], G[4] - b * b * G[2]; hB1, hB2 = G[3] - a * a * G[1], G[4] - a * a * G[2]
    R1 = d[5] + k1 * d[3] + k0 * d[1]
    V = {"pa": hA2 + a * hA1, "ma": hA2 - a * hA1, "pb": hB2 + b * hB1, "mb": hB2 - b * hB1, "c": R1,
         "0": d[4] + k1 * d[2] + k0 * d[0] - R1 / c, "i": R1 - (d[6] + k1 * d[4] + k0 * d[2]) / c}
    ev = lambda p: g[0] + p * g[1] + p * p * g[2] + p ** 3 * g[3]
    U = {"pa": K["pa"] * ev(a), "ma": K["ma"] * ev(-a), "pb": K["pb"] * ev(b), "mb": K["mb"] * ev(-b), "c": K["c"] * ev(c), "0": 4 * g[0], "i": -4 * g[3]}
    m = {k: U[k] * V[k] for k in U}
    sa, da, sb, db = m["pa"] + m["ma"], m["pa"] - m["ma"], m["pb"] + m["mb"], m["pb"] - m["mb"]
    Z1 = da + b * db; T0 = sb + sa / a - Z1 / c; W = a * sa + b * b * sb - c * Z1; T3 = (a * a - c * c) * da + b * (b * b - c * c) * db
    Z1 += m["c"]; T0 += m["0"]; T3 += m["i"]
    z = [T0 + Z1 / c, Z1, W + c * Z1, T3 + c * c * Z1]
    for i in range(4):
        y = LOG2E * sum(d[i + k] * g[k] for k in range(4))
        assert abs(y - z[i]) < 1e-9, (i, y, z[i])


def gen_main(cfg):
    C = consts(cfg); ca, cb, cc, k0, k1 = C["a"], C["b"], C["c"], C["k0"], C["k1"]
    st = [(k, c, kk) for ph in (P1, P2) for c in range(4) for k in ph for kk in range(2)]
    nst = len(st)
    tpos = []; t_ = 0
    for (k, c, kk) in st:
        tpos.append(t_); t_ += NG[k]
    assert t_ == NFR
    E = Emitter(cfg); A = E.raw

    vp = [1]
    def valloc(n, align=1):
        while vp[0] % align: vp[0] += 1
        b = vp[0]; vp[0] += n
        assert vp[0] <= 256, vp[0]
        return b
    vXO = valloc(6); vBO = valloc(2); vWB = valloc(2); vRB = valloc(2); vOM = valloc(1)
    vS1 = valloc(64, 4)
    vFIFO = valloc(4 * cfg.nfifo, 4)
    vRAW = valloc(4 * cfg.nraw, 4)
    vOUT = valloc(16, 4)
    NT = 48; vT = valloc(NT, 2)
    NE = 24; vE = valloc(NE, 2)
    aS0, aS2, aS3, aB = 0, 64, 128, 192
    accreg = {"pa": ("a", aS0), "0": ("a", aS0), "ma": ("v", vS1), "c": ("v", vS1), "pb": ("a", aS2), "mb": ("a", aS3), "i": ("a", aS3)}
    sX, sU, sO, sW = 4, 8, 12, 20
    sBO = 16; sWV = 17; sNQ = 18; sFAIL = 19
    sST = 24
    sNON = 32
    sDBG = 34
    sTMP = 36
    sSTAMP = 48
    sCONST0 = 80 if cfg.stamps else 48
    ctab = {}
    def cs(v):
        u = f2u(v)
        if u not in ctab:
            ctab[u] = sCONST0 + len(ctab); assert ctab[u] <= 101
        return ctab[u]
    nstamp = [4]
    def stamp(i=None):
        if cfg.stamps:
            if i is None:
                i = nstamp[0]; nstamp[0] += 1
            assert sSTAMP + 2 * i + 1 < sCONST0
            A(f"s_memtime s[{sSTAMP + 2 * i}:{sSTAMP + 2 * i + 1}]")

    def V(lst, txt, rd, wr, kind="V"):
        op = Op(txt, kind, rd=rd, wr=wr); lst.append(op); return op
    def pr(r): return f"v[{r}:{r + 1}]"
    def R2(*rs): return [f"v{r + i}" for r in rs for i in range(2)]
    def fma2(lst, pk, d, x, k, y):
        if pk:
            s = cs(abs(k)); e = s & ~1; o = s & 1; n = 1 if k < 0 else 0
            V(lst, f"v_pk_fma_f32 {pr(d)}, {pr(x)}, s[{e}:{e + 1}], {pr(y)} op_sel:[0,{o},0] op_sel_hi:[1,{o},1] neg_lo:[{n},0,0] neg_hi:[{n},0,0]", R2(x, y), R2(d))
        else:
            for i in range(2):
                if d == y:
                    V(lst, f"v_fmac_f32 v{d + i}, s{cs(k)}, v{x + i}", [f"v{x + i}", f"v{d + i}"], [f"v{d + i}"])
                else:
                    V(lst, f"v_fma_f32 v{d + i}, {'-' if k < 0 else ''}v{x + i}, s{cs(abs(k))}, v{y + i}", [f"v{x + i}", f"v{y + i}"], [f"v{d + i}"])
    def mul2(lst, pk, d, x, k):
        if pk:
            s = cs(abs(k)); e = s & ~1; o = s & 1; n = 1 if k < 0 else 0
            V(lst, f"v_pk_mul_f32 {pr(d)}, {pr(x)}, s[{e}:{e + 1}] op_sel:[0,{o}] op_sel_hi:[1,{o}] neg_lo:[{n},0] neg_hi:[{n},0]", R2(x), R2(d))
        else:
            for i in range(2):
                V(lst, f"v_mul_f32 v{d + i}, s{cs(k)}, v{x + i}", [f"v{x + i}"], [f"v{d + i}"])
    def add2(lst, pk, d, x, y, sub=False):
        if pk:
            n = 1 if sub else 0
            V(lst, f"v_pk_add_f32 {pr(d)}, {pr(x)}, {pr(y)} neg_lo:[0,{n}] neg_hi:[0,{n}]", R2(x, y), R2(d))
        else:
            for i in range(2):
                V(lst, f"v_{'sub' if sub else 'add'}_f32 v{d + i}, v{x + i}, v{y + i}", [f"v{x + i}", f"v{y + i}"], [f"v{d + i}"])

    uRAW = vS1; uOUT = vS1 + 32; uK = vE; uLD = vE + 8; uST = vE + 9; uSTI = vE + 10; uFL = vE + 11; uNON = vE + 12; uPOLL = vE + 14
    PRODS = P1 + P2
    def prod_loads(sl):
        t = sTMP
        A(f"s_and_b32 s{t}, s{sl}, 3"); A(f"s_lshl_b32 s{t}, s{t}, 7")
        A(f"s_bfe_u32 s{t + 1}, s{sl}, 0x10002"); A(f"s_lshl_b32 s{t + 1}, s{t + 1}, 6"); A(f"s_add_u32 s{t}, s{t}, s{t + 1}")
        A(f"s_lshr_b32 s{t + 1}, s{sl}, 3"); A(f"s_lshl_b32 s{t + 1}, s{t + 1}, 13"); A(f"s_add_u32 s{sST}, s{t}, s{t + 1}")
        for i in range(1, 8):
            A(f"s_add_u32 s{sST + i}, s{sST}, {(i // 2) * 262144 + (i % 2) * 4096}")
        for dd in range(8):
            for k in range(4):
                r = uRAW + k * 8 + dd
                E.emit(Op(f"buffer_load_short_d16_hi v{r}, v{uLD}, s[{sW}:{sW + 3}], s{sST + k * 2 + dd // 4} offen offset:{(dd % 4) * 1024}", "G", wr=[f"v{r}"]))
    def prod_compute(sl):
        t = sTMP
        A(f"s_and_b32 s{t}, s{sl}, 7"); A(f"s_lshl_b32 s{t + 1}, s{t}, 1"); A(f"s_and_b32 s{t + 1}, s{t + 1}, 6"); A(f"s_lshr_b32 s{t}, s{t}, 2")
        A(f"s_add_u32 s{t}, s{t}, s{t + 1}"); A(f"s_mul_i32 s{t}, s{t}, {4 * STREAM}")
        A(f"s_bfe_u32 s{t + 1}, s{sl}, 0x20003"); A(f"s_lshl_b32 s{t + 1}, s{t + 1}, 8"); A(f"s_add_u32 s{t}, s{t}, s{t + 1}")
        A(f"s_bfe_u32 s{t + 1}, s{sl}, 0x10005")
        A(f"s_lshr_b32 s{t + 2}, s{sl}, 6")
        ops = []
        T_ = vT
        for w in range(4):
            g = [uRAW + k * 8 + 2 * w for k in range(4)]
            def fin(pi, x):
                kr = uK + pi; e = kr & ~1; o = kr & 1
                V(ops, f"v_pk_mul_f32 {pr(T_ + 10)}, {pr(x)}, {pr(e)} op_sel:[0,{o}] op_sel_hi:[1,{o}]", R2(x), R2(T_ + 10))
                V(ops, f"v_cvt_pk_bf16_f32 v{uOUT + 4 * pi + w}, v{T_ + 10}, v{T_ + 11}", R2(T_ + 10), [f"v{uOUT + 4 * pi + w}"])
            for pi, p in ((0, ca), (2, cb)):
                fma2(ops, True, T_, g[2], p * p, g[0]); fma2(ops, True, T_ + 2, g[3], p * p, g[1])
                fma2(ops, True, T_ + 4, T_ + 2, p, T_); fma2(ops, True, T_ + 6, T_ + 2, -p, T_)
                fin(pi, T_ + 4); fin(pi + 1, T_ + 6)
            fma2(ops, True, T_ + 8, g[3], cc, g[2]); fma2(ops, True, T_ + 8, T_ + 8, cc, g[1]); fma2(ops, True, T_ + 8, T_ + 8, cc, g[0])
            fin(4, T_ + 8); fin(5, g[0]); fin(6, g[3])
        first = True
        for o in ops:
            E.emit(o)
            if first:
                first = False
                for pi, k in enumerate(PRODS):
                    base = tpos[st.index((k, 0, 0))]; mul = tpos[st.index((k, 1, 0))] - base
                    for c in range(4):
                        for kk in range(2):
                            assert tpos[st.index((k, c, kk))] == base + mul * c + kk * NG[k]
                    A(f"s_mul_i32 s{t + 3}, s{t + 2}, {mul * 1024}"); A(f"s_mul_i32 s{t + 4}, s{t + 1}, {NG[k] * 1024}")
                    A(f"s_add_u32 s{t + 3}, s{t + 3}, s{t + 4}"); A(f"s_add_u32 s{t + 3}, s{t + 3}, {base * 1024}")
                    A(f"s_add_u32 s{t + 5 + pi}, s{t + 3}, s{t}")
        stores = []
        for pi, k in enumerate(PRODS):
            b = uOUT + 4 * pi
            o = Op(f"buffer_store_dwordx4 {rng('v', b, 4)}, v{uSTI if k == 'i' else uST}, s[{sU}:{sU + 3}], s{t + 5 + pi} offen sc1", "S", rd=regs("v", b, 4))
            E.emit(o); stores.append(o)
        return stores

    mf = []; frags = []; acc_touch = {}; buse = {}; started = set(); step_start = []
    for si, (k, c, kk) in enumerate(st):
        step_start.append(len(mf))
        pre, base = accreg[k]
        ng = NG[k]
        for j in range(MB + ng - 1):
            fr = vFIFO + 4 * (len(frags) % cfg.nfifo)
            first = len(mf)
            for a in range(max(0, j - MB + 1), min(ng - 1, j) + 1):
                for eb in range(2):
                    u = (j - a) * 2 + eb
                    br = aB + ((si % 2) * 8 + a * 2 + eb) * 4
                    d = base + 4 * u; key = (pre, base, u); D = rng(pre, d, 4)
                    fresh = key not in started; started.add(key)
                    op = Op(f"v_mfma_f32_16x16x32_bf16 {D}, {rng('a', br, 4)}, {rng('v', fr, 4)}, {'0' if fresh else D}", "M",
                            rd=regs("a", br, 4) + regs("v", fr, 4) + ([] if fresh else regs(pre, d, 4)),
                            wr=regs(pre, d, 4), srcc=([] if fresh else regs(pre, d, 4)))
                    acc_touch.setdefault((k, u), []).append(len(mf))
                    bu = buse.setdefault((si, a, eb), [len(mf), len(mf)]); bu[1] = len(mf)
                    mf.append(op)
            frags.append((si, j, first, len(mf) - 1, fr))
    NM = len(mf); step_start.append(NM)
    chunks = []; si = 0
    for ph in (P1, P2):
        for c in range(4):
            chunks.append((ph, c, si, 2 * len(ph))); si += 2 * len(ph)
    chunk_of_step = {s_: ci for ci, (ph, c, s0, ns) in enumerate(chunks) for s_ in range(s0, s0 + ns)}

    bstream = []
    lastuse = {}
    for si in range(nst):
        ng = NG[st[si][0]]
        for a in range(ng):
            t = tpos[si] + a
            if t % 4 == 0 and t > 0:
                bstream.append(Op(f"s_add_u32 s{sBO}, s{sBO}, 4096", "A", earliest=bstream[-1].earliest))
            for eb in range(2):
                br = aB + ((si % 2) * 8 + a * 2 + eb) * 4
                first = buse[(si, a, eb)][0]
                prev = lastuse.get(br, -1)
                tgt = step_start[si] - cfg.look_b + (a * 2 + eb) * 7
                e = max(prev, tgt)
                if e < 0: e = -1
                bstream.append(Op(f"buffer_load_dwordx4 {rng('a', br, 4)}, v{vBO + eb}, s[{sU}:{sU + 3}], s{sBO} offen offset:{(t % 4) * 1024} sc1",
                                  "G", wr=regs("a", br, 4), earliest=e, deadline=max(e, first - 24)))
                lastuse[br] = buse[(si, a, eb)][1]

    RG = [0, 2, 6, 10, 14, 18]
    def xaddr(rho, c):
        gi = max(i for i in range(6) if RG[i] <= rho)
        return vXO + gi, (rho - RG[gi]) * 1024 + c * 128

    barrier = [Op("s_barrier", "B") for _ in chunks]
    raw_free = [(vRAW + 4 * i, None) for i in range(cfg.nraw)]
    extra_raw = [(vFIFO + 4 * i, None) for i in range(cfg.nfifo)]
    xstream = []; tstreams = []; round_end = []
    T = Pool([vT + 2 * i for i in range(NT // 2)])
    for ci, (ph, c, s0, ns) in enumerate(chunks):
        ts = []; setb = ci % 2; p2 = ph is P2; pk = cfg.pk and ci == 0
        rows = {}
        def load_row(rho):
            tmp = ci == 0 and bool(extra_raw)
            r, last = (extra_raw if tmp else raw_free).pop(0)
            va, off = xaddr(rho, c)
            op = Op(f"buffer_load_dwordx4 {rng('v', r, 4)}, v{va}, s[{sX}:{sX + 3}], 0 offen offset:{off}", "G",
                    wr=regs("v", r, 4), after=([last] if last else []))
            op.minage = ci; xstream.append(op); rows[rho] = (r, op, tmp)
        def unpack(rho, w):
            r, lop, _ = rows[rho]; t = T.get()
            V(ts, f"v_lshlrev_b32 v{t}, 16, v{r + w}", [f"v{r + w}"], [f"v{t}"]).after.append(lop)
            V(ts, f"v_and_b32 v{t + 1}, s{cs_mask}, v{r + w}", [f"v{r + w}"], [f"v{t + 1}"]).after.append(lop)
            return t
        cs_mask = ctab.setdefault(0xffff0000, sCONST0 + len(ctab))
        carry = {}
        for n in range(4):
            if p2:
                newrows = ([0, 1, 2] if n == 0 else []) + [4 * n + 3 + i for i in range(4)]
            else:
                newrows = ([1] if n == 0 else []) + [4 * n + 2 + i for i in range(4)]
            for rho in newrows: load_row(rho)
            for w in range(4):
                if p2:
                    if n == 0: carry[w] = [unpack(i, w) for i in range(3)]
                    d0, d1, d2 = carry[w]
                    d3 = unpack(4 * n + 3, w); d5 = unpack(4 * n + 5, w)
                    fma2(ts, pk, d3, d3, k1, d5); fma2(ts, pk, d3, d1, k0, d3)
                    d4 = unpack(4 * n + 4, w); d6 = unpack(4 * n + 6, w)
                    fma2(ts, pk, d0, d0, k0, d4); fma2(ts, pk, d1, d6, -1 / cc, d3)
                    fma2(ts, pk, d0, d2, k1, d0); fma2(ts, pk, d1, d4, -k1 / cc, d1)
                    fma2(ts, pk, d0, d3, -1 / cc, d0); fma2(ts, pk, d1, d2, -k0 / cc, d1)
                    res = [d3, d0, d1]; T.put(d2)
                    carry[w] = [d4, d5, d6]
                else:
                    if n == 0: carry[w] = [unpack(1, w)]
                    d1 = carry[w][0]
                    d2 = unpack(4 * n + 2, w); d3 = unpack(4 * n + 3, w); d4 = unpack(4 * n + 4, w); d5 = unpack(4 * n + 5, w)
                    g4 = T.get()
                    fma2(ts, pk, g4, d4, -cc, d5); fma2(ts, pk, d4, d3, -cc, d4); fma2(ts, pk, d3, d2, -cc, d3); fma2(ts, pk, d2, d1, -cc, d2)
                    g1, g2, g3 = d2, d3, d4
                    hA1 = d1; hA2 = T.get()
                    fma2(ts, pk, hA1, g1, -cb * cb, g3); fma2(ts, pk, hA2, g2, -cb * cb, g4)
                    fma2(ts, pk, g3, g1, -ca * ca, g3); fma2(ts, pk, g4, g2, -ca * ca, g4)
                    fma2(ts, pk, g1, hA1, ca, hA2); fma2(ts, pk, hA2, hA1, -ca, hA2)
                    fma2(ts, pk, g2, g3, cb, g4); fma2(ts, pk, g4, g3, -cb, g4)
                    res = [g1, hA2, g2, g4]; T.put(hA1); T.put(g3)
                    carry[w] = [d5]
                for pi, r in enumerate(res):
                    V(ts, f"v_cvt_pk_bf16_f32 v{vOUT + 4 * pi + w}, v{r}, v{r + 1}", R2(r), [f"v{vOUT + 4 * pi + w}"]); T.put(r)
            last = ts[-1]
            for rho in newrows:
                r, op, tmp = rows.pop(rho)
                if not tmp: raw_free.append((r, last))
            for pi in range(len(ph)):
                ts.append(Op(f"ds_write_b128 v{vWB + setb}, {rng('v', vOUT + 4 * pi, 4)} offset:{pi * US + ((n >> 1) * 32 + (n & 1)) * 16}", "W",
                             rd=regs("v", vOUT + 4 * pi, 4), after=([barrier[ci - 1]] if ci >= 1 else [])))
            if ci == 0: round_end.append(len(ts))
        for v_ in carry.values():
            for r in v_: T.put(r)
        barrier[ci].after = [ts[-1]]
        tstreams.append(ts)

    vstream = []; bar_time = {}
    for fi, (si, j, first, last, fr) in enumerate(frags):
        k, c, kk = st[si]; ci = chunk_of_step[si]; ph = chunks[ci][0]
        prev = frags[fi - cfg.nfifo][3] if fi >= cfg.nfifo else -1
        e = max(prev, first - cfg.look_v)
        if ci not in bar_time:
            be = (vstream[-1].earliest + cfg.bar_delay) if vstream else -1
            bar_time[ci] = be; barrier[ci].earliest = be; barrier[ci].deadline = be
            vstream.append(barrier[ci])
        jp = j & 7
        off = ph.index(k) * US + kk * 4 * PLB + ((jp >> 1) * 32 + (jp & 1) + 2 * (j >> 3)) * 16
        vstream.append(Op(f"ds_read_b128 {rng('v', fr, 4)}, v{vRB + ci % 2} offset:{off}", "R", wr=regs("v", fr, 4),
                          earliest=e, deadline=max(e, first - 6), after=[barrier[ci]]))
    for ci in range(1, 8):
        ts = tstreams[ci]
        t_lo = bar_time[ci - 1] + 1; t_hi = bar_time[ci] - 12
        if ci == 4: t_hi -= 60
        tot = sum(COST[o.kind] for o in ts); acc = 0
        for o in ts:
            o.earliest = t_lo + (acc * (t_hi - t_lo)) // tot; acc += COST[o.kind]; o.deadline = bar_time[ci]

    HZ = 9
    EP = Pool([vE + 2 * i for i in range(NE // 2)])
    stg = [EP.free.pop(), EP.free.pop()]
    def accrd(lst, d, areg):
        for i in range(2): V(lst, f"v_accvgpr_read_b32 v{d + i}, a{areg + i}", [f"a{areg + i}"], [f"v{d + i}"])
    def accwr(lst, areg, s_):
        for i in range(2): V(lst, f"v_accvgpr_write_b32 a{areg + i}, v{s_ + i}", [f"v{s_ + i}"], [f"a{areg + i}"])
    def basis_unit(u, pk):
        ops = []
        for hf in range(2):
            o = 4 * u + 2 * hf; z = vS1 + o
            x0 = EP.get(); x2 = EP.get(); x3 = EP.get(); sa = EP.get(); sb = EP.get()
            accrd(ops, x0, aS0 + o); accrd(ops, x2, aS2 + o); accrd(ops, x3, aS3 + o)
            add2(ops, pk, sa, x0, z); add2(ops, pk, z, x0, z, True)
            add2(ops, pk, sb, x2, x3); add2(ops, pk, x3, x2, x3, True)
            mul2(ops, pk, x0, z, ca * ca - cc * cc)
            mul2(ops, pk, x2, sa, ca)
            fma2(ops, pk, z, x3, cb, z)
            fma2(ops, pk, x0, x3, cb * (cb * cb - cc * cc), x0)
            fma2(ops, pk, x2, sb, cb * cb, x2)
            fma2(ops, pk, sb, sa, 1 / ca, sb)
            accwr(ops, aS3 + o, x0)
            fma2(ops, pk, x2, z, -cc, x2)
            fma2(ops, pk, sb, z, -1 / cc, sb)
            accwr(ops, aS2 + o, x2); accwr(ops, aS0 + o, sb)
            for r in (x0, x2, x3, sa, sb): EP.put(r)
        return ops
    def epi_unit(yi, m, pk, sg):
        ops = []
        z = [vS1 + 8 * m + 2 * i for i in range(4)]
        e = [EP.get() for _ in range(4)]
        if yi == 1:
            src = z
        else:
            ab = {0: aS0, 2: aS2, 3: aS3}[yi] + 8 * m; kz = {0: 1 / cc, 2: cc, 3: cc * cc}[yi]
            for i in range(4): accrd(ops, e[i], ab + 2 * i)
            for i in range(4): fma2(ops, pk, e[i], z[i], kz, e[i])
            src = e
        for i in range(4):
            V(ops, f"v_min_f32 v{e[i // 2] + i % 2}, s{cs(30.0)}, v{src[i // 2] + i % 2}", [f"v{src[i // 2] + i % 2}"], [f"v{e[i // 2] + i % 2}"])
        for i in range(4):
            r = e[i // 2] + i % 2; V(ops, f"v_exp_f32 v{r}, v{r}", [f"v{r}"], [f"v{r}"], "T")
        for i in range(4):
            r = e[2 + i // 2] + i % 2; s_ = src[2 + i // 2] + i % 2; V(ops, f"v_exp_f32 v{r}, v{s_}", [f"v{s_}"], [f"v{r}"], "T")
        p = [EP.get(), EP.get()]
        for hf in range(2):
            if pk: V(ops, f"v_pk_add_f32 {pr(p[hf])}, {pr(e[hf])}, 1.0 op_sel_hi:[1,0]", R2(e[hf]), R2(p[hf]))
            else:
                for i in range(2): V(ops, f"v_add_f32 v{p[hf] + i}, 1.0, v{e[hf] + i}", [f"v{e[hf] + i}"], [f"v{p[hf] + i}"])
        for hf in range(2):
            if pk: V(ops, f"v_pk_fma_f32 {pr(p[hf])}, {pr(p[hf])}, {pr(e[2 + hf])}, {pr(p[hf])}", R2(p[hf], e[2 + hf]), R2(p[hf]))
            else:
                for i in range(2): V(ops, f"v_fmac_f32 v{p[hf] + i}, v{p[hf] + i}, v{e[2 + hf] + i}", [f"v{p[hf] + i}", f"v{e[2 + hf] + i}"], [f"v{p[hf] + i}"])
        for i in range(4):
            r = p[i // 2] + i % 2; V(ops, f"v_rcp_f32 v{r}, v{r}", [f"v{r}"], [f"v{r}"], "T")
        for hf in range(2):
            if pk: V(ops, f"v_pk_fma_f32 {pr(p[hf])}, {pr(e[hf])}, {pr(p[hf])}, {pr(p[hf])} neg_lo:[1,0,0] neg_hi:[1,0,0]", R2(p[hf], e[hf]), R2(p[hf]))
            else:
                for i in range(2): V(ops, f"v_fma_f32 v{p[hf] + i}, -v{e[hf] + i}, v{p[hf] + i}, v{p[hf] + i}", [f"v{p[hf] + i}", f"v{e[hf] + i}"], [f"v{p[hf] + i}"])
        for hf in range(2):
            V(ops, f"v_cvt_pk_bf16_f32 v{sg + hf}, v{p[hf]}, v{p[hf] + 1}", R2(p[hf]), [f"v{sg + hf}"])
        ops.append(Op(f"buffer_store_dwordx2 {pr(sg)}, v{vOM}, s[{sO}:{sO + 3}], s{sST + m} offen offset:{yi * 1024}", "S", rd=R2(sg)))
        for r in e + p: EP.put(r)
        return ops
    items = []
    for u in range(2 * MB):
        items.append(("basis", u, max(acc_touch[(k, u)][-1] for k in P1) + HZ, acc_touch[("c", u)][0] - 2))
    for yi, k in ((1, "c"), (2, "c"), (0, "0"), (3, "i")):
        for m in range(MB):
            items.append(("epi", (yi, m), max(acc_touch[(kx, u)][-1] for kx in (k, "c") for u in (2 * m, 2 * m + 1)) + HZ, None))
    icnt = [0]
    def expand(pk):
        kind, arg, lo, hi = items.pop(0)
        icnt[0] += 1
        ops = basis_unit(arg, pk) if kind == "basis" else epi_unit(arg[0], arg[1], pk, stg[icnt[0] % 2])
        for o in ops: o.earliest = lo; o.deadline = hi
        return ops

    A(f".globl {KN}"); A(".p2align 8"); A(f".type {KN},@function"); A(f"{KN}:")
    A("s_cmp_lt_u32 s2, 256"); A("s_cbranch_scc1 Lm_go"); A("s_endpgm"); A("Lm_go:")
    A("s_load_dwordx2 s[4:5], s[0:1], 0"); A(f"s_load_dwordx2 s[{sW}:{sW + 1}], s[0:1], 8")
    A("s_load_dwordx2 s[12:13], s[0:1], 16"); A(f"s_load_dwordx2 s[{sDBG}:{sDBG + 1}], s[0:1], 24")
    A("s_load_dwordx2 s[8:9], s[0:1], 32")
    A(f"s_memrealtime s[{sNON}:{sNON + 1}]")
    if cfg.stamps:
        A(f"s_memrealtime s[{sSTAMP}:{sSTAMP + 1}]"); stamp(2)
    t0 = vT
    if cfg.prefetch_code:
        A(f"s_getpc_b64 s[{sTMP + 10}:{sTMP + 11}]"); A("Lm_pc:")
        A(f"v_lshlrev_b32 v{t0 + 8}, 5, v0")
        E.emit(Op(f"global_load_dword v{vOUT}, v{t0 + 8}, s[{sTMP + 10}:{sTMP + 11}]", "G", wr=[f"v{vOUT}"]))
    for i in range(32): A(f"v_mov_b32 v{uRAW + i}, 0")
    A(f"v_and_b32 v{t0 + 2}, 63, v0"); A(f"v_lshrrev_b32 v{t0 + 3}, 6, v0")
    A(f"v_lshrrev_b32 v{t0 + 4}, 5, v{t0 + 2}"); A(f"v_and_b32 v{t0 + 5}, 31, v0")
    A(f"v_lshlrev_b32 v{uLD}, 20, v{t0 + 3}"); A(f"v_lshl_add_u32 v{uLD}, v{t0 + 4}, 9, v{uLD}"); A(f"v_lshl_add_u32 v{uLD}, v{t0 + 5}, 1, v{uLD}")
    A(f"s_mov_b32 s{sW + 2}, 3932160"); A(f"s_mov_b32 s{sW + 3}, 0x20000")
    A("s_waitcnt lgkmcnt(0)")
    prod_loads(2)
    t = sTMP
    if cfg.xcdmap == 0:
        A(f"s_and_b32 s{t}, s2, 7"); A(f"s_lshr_b32 s{sNQ}, s2, 3"); A(f"s_lshl_b32 s{t}, s{t}, 3"); A(f"s_lshr_b32 s{t + 1}, s{sNQ}, 2")
        A(f"s_add_u32 s{t}, s{t}, s{t + 1}"); A(f"s_and_b32 s{sNQ}, s{sNQ}, 3")
    elif cfg.xcdmap == 1:
        A(f"s_and_b32 s{sNQ}, s2, 3"); A(f"s_lshr_b32 s{t}, s2, 2")
    else:
        A(f"s_and_b32 s{sNQ}, s2, 1"); A(f"s_bfe_u32 s{t + 1}, s2, 0x10003"); A(f"s_lshl_b32 s{t + 1}, s{t + 1}, 1"); A(f"s_add_u32 s{sNQ}, s{sNQ}, s{t + 1}")
        A(f"s_bfe_u32 s{t}, s2, 0x20001"); A(f"s_lshl_b32 s{t}, s{t}, 4"); A(f"s_lshr_b32 s{t + 1}, s2, 4"); A(f"s_add_u32 s{t}, s{t}, s{t + 1}")
    A(f"s_lshr_b32 s{t + 1}, s{t}, 5"); A(f"s_mul_i32 s{t + 1}, s{t + 1}, 8192000")
    A(f"s_bfe_u32 s{t + 2}, s{t}, 0x10004"); A(f"s_lshl_b32 s{t + 2}, s{t + 2}, 9"); A(f"s_add_u32 s{t + 1}, s{t + 1}, s{t + 2}")
    A(f"s_and_b32 s{t + 2}, s{t}, 15"); A(f"s_mul_i32 s{t + 2}, s{t + 2}, {500 * 1024}")
    A(f"s_sub_u32 s{t + 3}, s{t + 2}, {14 * 1024}")
    A(f"v_lshrrev_b32 v{t0}, 3, v0"); A(f"v_and_b32 v{t0 + 1}, 7, v0")
    A(f"v_lshlrev_b32 v{t0 + 6}, 14, v{t0}"); A(f"v_lshl_add_u32 v{t0 + 6}, v{t0 + 1}, 4, v{t0 + 6}")
    A(f"v_add_u32 v{vXO}, s{t + 3}, v{t0 + 6}")
    for i in range(1, 6): A(f"v_add_u32 v{vXO + i}, {RG[i] * 1024}, v{vXO}")
    A(f"s_sub_u32 s6, 16384000, s{t + 1}"); A("s_mov_b32 s7, 0x20000")
    A(f"s_add_u32 s4, s4, s{t + 1}"); A("s_addc_u32 s5, s5, 0")
    n0 = sum(1 for o in xstream if o.minage == 0)
    for o in xstream[:n0]: E.emit(o)
    xi = n0
    A("s_cmp_lg_u32 s2, 0"); A("s_cbranch_scc1 Lm_nn")
    A(f"s_or_b32 s{sNON}, s{sNON}, 1"); A(f"v_mov_b32 v{uNON}, s{sNON}"); A(f"v_mov_b32 v{uNON + 1}, s{sNON + 1}"); A(f"v_mov_b32 v{t0 + 7}, 0")
    A("v_cmp_eq_u32 vcc, 0, v0"); A(f"s_and_saveexec_b64 s[{t + 4}:{t + 5}], vcc"); A("s_cbranch_execz Lm_n1")
    if not cfg.force_fallback:
        A(f"global_store_dwordx2 v{t0 + 7}, {pr(uNON)}, s[{sDBG}:{sDBG + 1}] sc1")
    A("Lm_n1:"); A(f"s_mov_b64 exec, s[{t + 4}:{t + 5}]"); A("Lm_nn:")
    if cfg.prefetch_code:
        A(f"s_lshr_b32 s{t + 4}, s2, 3"); A(f"s_lshl_b32 s{t + 4}, s{t + 4}, 12")
        A(f"v_lshl_add_u32 v{t0 + 8}, v0, 4, s{t + 4}")
        A(f"v_min_u32 v{t0 + 8}, Lm_last-Lm_pc-16, v{t0 + 8}"); A(f"v_and_b32 v{t0 + 8}, 0xfffffff0, v{t0 + 8}")
        E.emit(Op(f"global_load_dword v{vOUT + 1}, v{t0 + 8}, s[{sTMP + 10}:{sTMP + 11}]", "G", wr=[f"v{vOUT + 1}"]))
    A(f"s_add_u32 s12, s12, s{t + 1}"); A("s_addc_u32 s13, s13, 0")
    A(f"s_add_u32 s14, s{t + 2}, {500 * 1024 - 512}"); A("s_mov_b32 s15, 0x20000")
    A(f"s_mov_b32 s10, {UBYTES + 256 * 128}"); A("s_mov_b32 s11, 0x20000")
    A(f"v_and_b32 v{t0 + 6}, 15, v0"); A(f"v_bfe_u32 v{t0 + 7}, v0, 4, 2")
    A(f"s_lshl_b32 s{t + 3}, s{sNQ}, 7"); A(f"s_add_u32 s{t + 3}, s{t + 3}, s{t + 2}")
    A(f"v_lshlrev_b32 v{vOM}, 15, v{t0 + 6}"); A(f"v_lshl_add_u32 v{vOM}, v{t0 + 3}, 5, v{vOM}"); A(f"v_lshl_add_u32 v{vOM}, v{t0 + 7}, 3, v{vOM}")
    A(f"v_add_u32 v{vOM}, s{t + 3}, v{vOM}")
    A(f"v_mul_u32_u24 v{vRB}, {PLB}, v{t0 + 7}"); A(f"v_lshl_add_u32 v{vRB}, v{t0 + 6}, 5, v{vRB}"); A(f"v_add_u32 v{vRB + 1}, {4 * US}, v{vRB}")
    A(f"v_mul_u32_u24 v{vWB}, {PLB}, v{t0 + 1}"); A(f"v_and_b32 v{t0 + 8}, 1, v{t0}"); A(f"v_lshl_add_u32 v{vWB}, v{t0 + 8}, 10, v{vWB}")
    A(f"v_lshrrev_b32 v{t0 + 8}, 1, v{t0}"); A(f"v_lshl_add_u32 v{vWB}, v{t0 + 8}, 5, v{vWB}"); A(f"v_add_u32 v{vWB + 1}, {4 * US}, v{vWB}")
    A(f"s_lshl_b32 s{t + 3}, s{sNQ}, 2"); A(f"v_add_u32 v{t0 + 8}, s{t + 3}, v{t0 + 3}"); A(f"v_mul_u32_u24 v{t0 + 8}, {2 * STREAM}, v{t0 + 8}")
    A(f"v_lshl_add_u32 v{vBO}, v{t0 + 2}, 4, v{t0 + 8}"); A(f"v_add_u32 v{vBO + 1}, {STREAM}, v{vBO}")
    A(f"v_bfe_u32 v{t0 + 8}, v0, 4, 1"); A(f"v_lshl_add_u32 v{t0 + 8}, v{t0 + 8}, 1, v{t0 + 4}"); A(f"v_mul_u32_u24 v{uST}, {STREAM}, v{t0 + 8}")
    A(f"v_lshl_add_u32 v{uST}, v{t0 + 6}, 4, v{uST}"); A(f"v_lshl_add_u32 v{uST}, v{t0 + 3}, 10, v{uST}")
    A(f"v_cmp_eq_u32 vcc, 3, v{t0 + 3}"); A(f"v_mov_b32 v{t0 + 8}, 0x40000000"); A("s_nop 1"); A(f"v_cndmask_b32 v{uSTI}, v{uST}, v{t0 + 8}, vcc")
    A(f"v_cvt_f32_u32 v{t0 + 8}, v{t0 + 4}"); A(f"v_add_f32 v{t0 + 8}, -2.0, v{t0 + 8}")
    for pi, k in enumerate(PRODS): A(f"v_mul_f32 v{uK + pi}, {f2u(C['K'][k]):#x}, v{t0 + 8}")
    A(f"s_lshl_b32 s{t + 3}, s{sNQ}, 13"); A(f"s_add_u32 s{t + 3}, s{t + 3}, {FLAGOFF}"); A(f"v_lshl_add_u32 v{uFL}, v{t0 + 2}, 7, s{t + 3}")
    A(f"v_readfirstlane_b32 s{sWV}, v{t0 + 3}")
    A(f"s_mov_b32 s{sBO}, 0"); A(f"s_mov_b32 s{sFAIL}, 0")
    A("CONSTS_HERE")
    sv = cfg.age_vm; cfg.age_vm = 10 ** 9
    stamp()
    ust = prod_compute(2)
    A(f"v_mov_b32 v{uPOLL}, 0")
    non = Op(f"global_load_dwordx2 {pr(uNON)}, v{uPOLL}, s[{sDBG}:{sDBG + 1}] sc1", "G", wr=R2(uNON)); E.emit(non)
    stamp()
    for i in range(8): A(f"s_mov_b32 s{sST + i}, {i * 4096}")
    STAT = 8 * US + 64
    A(f"v_mov_b32 v{uPOLL + 1}, {STAT}"); E.emit(Op(f"ds_write_b32 v{uPOLL + 1}, v{uPOLL}", "W"))
    while xi < len(xstream) and all(a.pos is not None for a in xstream[xi].after):
        E.emit(xstream[xi]); xi += 1
    ts0 = tstreams[0]
    for o in ts0[:round_end[2]]: E.emit(o)
    E.emit_wait(E.vm.index(non), None, extend=False)
    E.wait_all(vm=False)
    A("s_barrier")
    stamp()
    A(f"s_mov_b32 s{t}, 0")
    A("Lm_nw:")
    A(f"v_readfirstlane_b32 s{sNON}, v{uNON}"); A(f"v_readfirstlane_b32 s{sNON + 1}, v{uNON + 1}")
    A(f"s_cmp_lg_u32 s{sNON}, 0"); A("s_cbranch_scc1 Lm_ng")
    A(f"s_add_u32 s{t}, s{t}, 1"); A(f"s_cmp_gt_u32 s{t}, {cfg.poll_max}"); A("s_cbranch_scc1 Lm_nf")
    A(f"global_load_dwordx2 {pr(uNON)}, v{uPOLL}, s[{sDBG}:{sDBG + 1}] sc1"); A("s_waitcnt vmcnt(0)"); A("s_branch Lm_nw")
    A("Lm_nf:"); A(f"s_mov_b32 s{sFAIL}, 1"); A("s_branch Lm_fd")
    A("Lm_ng:")
    A(f"s_cmp_lg_u32 s{sWV}, 0"); A("s_cbranch_scc1 Lm_fd")
    A(f"s_and_b32 s{t}, s2, 3"); A(f"s_lshl_b32 s{t}, s{t}, 13"); A(f"s_lshr_b32 s{t + 1}, s2, 2"); A(f"s_lshl_b32 s{t + 1}, s{t + 1}, 7")
    A(f"s_add_u32 s{t}, s{t}, s{t + 1}"); A(f"s_add_u32 s{t}, s{t}, {FLAGOFF}")
    A("s_mov_b64 exec, 1")
    A(f"buffer_store_dwordx2 {pr(uNON)}, v{uPOLL}, s[{sU}:{sU + 3}], s{t} offen sc1")
    A("s_mov_b64 exec, -1")
    A("Lm_fd:")
    for o in ts0[round_end[2]:]: E.emit(o)
    stamp()
    E.wait_all(lg=False)
    A(f"s_cmp_lg_u32 s{sFAIL}, 0"); A("s_cbranch_scc1 Lm_pf")
    A(f"s_mov_b32 s{t}, 0")
    A("Lm_pw:")
    A(f"buffer_load_dwordx2 {pr(uNON)}, v{uFL}, s[{sU}:{sU + 3}], 0 offen sc1"); A("s_waitcnt vmcnt(0)")
    A(f"v_cmp_ne_u64 vcc, s[{sNON}:{sNON + 1}], {pr(uNON)}"); A("s_nop 1"); A("s_cmp_eq_u64 vcc, 0"); A("s_cbranch_scc1 Lm_pg")
    A(f"s_add_u32 s{t}, s{t}, 1"); A(f"s_cmp_le_u32 s{t}, {cfg.poll_max}"); A("s_cbranch_scc1 Lm_pw")
    A("Lm_pf:")
    A(f"v_mov_b32 v{uPOLL}, 1"); A(f"ds_write_b32 v{uPOLL + 1}, v{uPOLL}"); A("s_branch Lm_ps")
    A("Lm_pg:")
    stamp()
    bi = 0
    b0 = []
    while bstream[bi].earliest < 0:
        b0.append(bstream[bi].txt); E.emit(bstream[bi]); bi += 1
    A("Lm_ps:")
    A("s_waitcnt lgkmcnt(0)"); E.lg.clear()
    vi = 0
    E.emit(vstream[0]); vi = 1
    A(f"ds_read_b32 v{uPOLL}, v{uPOLL + 1}")
    A("s_waitcnt lgkmcnt(0)")
    A(f"v_readfirstlane_b32 s{t}, v{uPOLL}"); A(f"s_cmp_lg_u32 s{t}, 0"); A("s_cbranch_scc1 Lm_fall")
    A("Lm_resume:")
    cfg.age_vm = sv
    while vstream[vi].earliest < 0:
        E.emit(vstream[vi]); vi += 1
    stamp()

    tstream = [o for ts in tstreams[1:] for o in ts]
    streams = {"v": [vstream, vi], "b": [bstream, bi], "x": [xstream, xi], "t": [tstream, 0], "e": [[], 0]}
    def head(k):
        lst, i = streams[k]
        return lst[i] if i < len(lst) else None
    def pop(k):
        E.emit(head(k)); streams[k][1] += 1
    def force(op):
        for a in op.after:
            if a.pos is None:
                for k in streams:
                    lst, i = streams[k]
                    if a in lst[i:]:
                        while a.pos is None:
                            force(head(k)); pop(k); E.stats["over"] += 1
                        break
                else:
                    raise RuntimeError("dep not found " + a.txt)
    def ready(op, t):
        if op is None or op.earliest > t or any(a.pos is None for a in op.after) or E.hazard(op) > 0:
            return False
        av, al = E.youngest_needed_age(op)
        return not ((av is not None and av < cfg.age_vm) or (al is not None and al < cfg.age_lgkm))
    def cost(op):
        v, l = E.need_wait(op)
        return COST[op.kind] + (1 if (v is not None or l is not None) else 0) + (1 if op.kind == "B" and E.lg else 0)
    gapstat = {}
    marks = {step_start[chunks[ci][2]] for ci in (1, 3, 4, 5, 7)}
    for t in range(NM):
        if t in marks: stamp()
        E.emit(mf[t])
        n_before = E.n
        cap = 2
        if t + 1 < NM:
            v, l = E.need_wait(mf[t + 1])
            if v is not None or l is not None: cap -= 1
        first = True
        while cap > 0:
            if head("e") is None and items and items[0][2] <= t and not (items[0][0] == "basis" and cfg.pk):
                streams["e"][0] += expand(False)
            cands = []
            for prio, k in enumerate(("v", "b", "x", "t", "e")):
                op = head(k)
                if not ready(op, t): continue
                mem = op.kind in ("R", "G", "S", "W")
                if mem and not first: continue
                c = cost(op)
                if c > cap or (mem and c > COST[op.kind]): continue
                if k == "e" and op.deadline is not None: prio = 2.5
                cands.append((prio, k, c))
            if not cands: break
            cands.sort(); _, k, c = cands[0]
            pop(k); cap -= c; first = False
        again = True
        while again:
            again = False
            if head("e") is None and items and items[0][3] is not None and items[0][3] <= t:
                streams["e"][0] += expand(cfg.pk)
            for k in ("e", "t", "b", "v"):
                op = head(k)
                if op is not None and op.deadline is not None and op.deadline <= t:
                    force(op); pop(k); E.stats["over"] += 1; again = True
        g = E.n - n_before; gapstat[g] = gapstat.get(g, 0) + 1
    stamp()
    for k in ("v", "b", "x", "t"): assert head(k) is None, k
    ntail = E.n
    while head("e") is not None or items:
        if head("e") is None: streams["e"][0] += expand(cfg.pk)
        pop("e")
    ntail = E.n - ntail
    if cfg.stamps:
        A("s_waitcnt vmcnt(0)")
        A(f"s_memrealtime s[{sSTAMP + 2}:{sSTAMP + 3}]"); stamp(3)
        A("s_waitcnt lgkmcnt(0)")
        A("s_add_u32 s40, s8, 0x8000000"); A("s_addc_u32 s41, s9, 0")
        A("s_lshl_b32 s3, s2, 8"); A("v_mov_b32 v2, s3")
        ns = 2 * nstamp[0]
        for i in range(52): A(f"v_mov_b32 v{4 + i}, s{sSTAMP + min(i, ns - 2 + i % 2)}")
        A("v_cmp_eq_u32 vcc, 0, v0"); A("s_and_saveexec_b64 s[30:31], vcc"); A("s_cbranch_execz Lm_end")
        for i in range(13): A(f"global_store_dwordx4 v2, v[{4 + 4 * i}:{7 + 4 * i}], s[40:41] offset:{16 * i}")
    A("Lm_end:")
    A("s_endpgm")
    A("Lm_fall:")
    E.vm.clear(); E.lg.clear(); E.pend.clear()
    A("s_waitcnt vmcnt(0)")
    A(f"s_mov_b32 s{sFAIL}, s{sNQ}")
    A("Lm_fl:")
    for i in range(32): A(f"v_mov_b32 v{uRAW + i}, 0")
    cfg.age_vm = 10 ** 9
    prod_loads(sFAIL); prod_compute(sFAIL)
    A("s_waitcnt vmcnt(0)")
    A(f"s_add_u32 s{sFAIL}, s{sFAIL}, 4"); A(f"s_cmp_lt_u32 s{sFAIL}, 256"); A("s_cbranch_scc1 Lm_fl")
    for i in range(8): A(f"s_mov_b32 s{sST + i}, {i * 4096}")
    A("s_barrier")
    A(f"s_mov_b32 s{sBO}, 0")
    for tx in b0: A(tx)
    A("s_waitcnt vmcnt(0)")
    A("s_branch Lm_resume")
    A("Lm_last:")
    A("s_endpgm")
    out = []
    for l in E.out:
        if l == "CONSTS_HERE":
            out += [f"s_mov_b32 s{r}, {u:#x}" for u, r in ctab.items()]
        else:
            out.append(l)
    sys.stderr.write(f"mfma {NM} instrs {E.n} stats {E.stats} gaps {sorted(gapstat.items())} tail {ntail} vgpr {vp[0]} consts {len(ctab)}\n")
    return out


def generate(cfg):
    selfcheck(cfg)
    L = ["; dilated causal conv (15 taps) + tanh*sigmoid gate; F(4,4) Toom-Cook over the taps, bf16 MFMA (emitted by a hand-written generator)",
         f"; @launch grid=(256,1,1) block=(256,1,1) lds={8 * US + 128}",
         '.amdgcn_target "amdgcn-amd-amdhsa--gfx950"', ".text"]
    L += gen_main(cfg)
    L += ['.section .rodata,"a"'] + kd(KN, 512, 256)
    return "\n".join(L) + "\n"


if __name__ == "__main__":
    ap = argparse.ArgumentParser(); ap.add_argument("out"); ap.add_argument("--set", action="append", default=[])
    a = ap.parse_args(); cfg = Cfg()
    for kv in a.set:
        k, v = kv.split("="); setattr(cfg, k, eval(v))
    open(a.out, "w").write(generate(cfg))
```

```python
import sys, argparse, math
from gen import Op, Emitter, Pool, COST, regs, rng, f2u, kd, KN

LOG2E = 1.4426950408889634
PL = 129; PLB = PL * 16; US = 8 * PLB
NFR = 216; STREAM = NFR * 1024
UBYTES = 32 * STREAM
FLAGOFF = UBYTES
MB = 8
P1 = ["pa", "ma", "pb", "mb"]; P2 = ["c", "0", "i"]
NG = {k: 4 for k in P1 + P2}; NG["i"] = 3


class Cfg:
    a = 1.09
    look_v = 26
    look_b = 70
    nfifo = 8
    nraw = 12
    stamps = False
    age_lgkm = 9
    age_vm = 44
    prefetch_code = True
    bar_delay = 7
    pk = True
    force_fallback = False
    poll_max = 400
    xcdmap = 0


def consts(cfg):
    a = cfg.a; c = 4 / LOG2E; k0 = LOG2E / 4; b = math.sqrt(k0) / a
    pts = {"0": 0.0, "pa": a, "ma": -a, "pb": b, "mb": -b, "c": c}
    f = {k: math.prod(p - q for kk, q in pts.items() if kk != k) for k, p in pts.items()}
    mua, mub = a, 1.0
    K = {"pa": LOG2E * mua / f["pa"], "ma": LOG2E * mua / f["ma"], "pb": LOG2E * mub / f["pb"], "mb": LOG2E * mub / f["mb"],
         "c": LOG2E * c / f["c"], "0": 4.0, "i": -4.0}
    return dict(a=a, b=b, c=c, k0=k0, k1=-(a * a + b * b), mua=mua, mub=mub, K=K)


def selfcheck(cfg):
    import random
    C = consts(cfg); a, b, c, k0, k1 = C["a"], C["b"], C["c"], C["k0"], C["k1"]; K = C["K"]
    d = [random.gauss(0, 1) for _ in range(7)]; g = [random.gauss(0, 1) for _ in range(4)]
    G = {s: d[s + 1] - c * d[s] for s in range(1, 5)}
    hA1, hA2 = G[3] - b * b * G[1], G[4] - b * b * G[2]; hB1, hB2 = G[3] - a * a * G[1], G[4] - a * a * G[2]
    R1 = d[5] + k1 * d[3] + k0 * d[1]
    V = {"pa": hA2 + a * hA1, "ma": hA2 - a * hA1, "pb": hB2 + b * hB1, "mb": hB2 - b * hB1, "c": R1,
         "0": d[4] + k1 * d[2] + k0 * d[0] - R1 / c, "i": R1 - (d[6] + k1 * d[4] + k0 * d[2]) / c}
    ev = lambda p: g[0] + p * g[1] + p * p * g[2] + p ** 3 * g[3]
    U = {"pa": K["pa"] * ev(a), "ma": K["ma"] * ev(-a), "pb": K["pb"] * ev(b), "mb": K["mb"] * ev(-b), "c": K["c"] * ev(c), "0": 4 * g[0], "i": -4 * g[3]}
    m = {k: U[k] * V[k] for k in U}
    sa, da, sb, db = m["pa"] + m["ma"], m["pa"] - m["ma"], m["pb"] + m["mb"], m["pb"] - m["mb"]
    Z1 = da + b * db; T0 = sb + sa / a - Z1 / c; W = a * sa + b * b * sb - c * Z1; T3 = (a * a - c * c) * da + b * (b * b - c * c) * db
    Z1 += m["c"]; T0 += m["0"]; T3 += m["i"]
    z = [T0 + Z1 / c, Z1, W + c * Z1, T3 + c * c * Z1]
    for i in range(4):
        y = LOG2E * sum(d[i + k] * g[k] for k in range(4))
        assert abs(y - z[i]) < 1e-9, (i, y, z[i])


def gen_main(cfg):
    C = consts(cfg); ca, cb, cc, k0, k1 = C["a"], C["b"], C["c"], C["k0"], C["k1"]
    st = [(k, c, kk) for ph in (P1, P2) for c in range(4) for k in ph for kk in range(2)]
    nst = len(st)
    tpos = []; t_ = 0
    for (k, c, kk) in st:
        tpos.append(t_); t_ += NG[k]
    assert t_ == NFR
    E = Emitter(cfg); A = E.raw

    vp = [1]
    def valloc(n, align=1):
        while vp[0] % align: vp[0] += 1
        b = vp[0]; vp[0] += n
        assert vp[0] <= 256, vp[0]
        return b
    vXO = valloc(6); vBO = valloc(2); vWB = valloc(2); vRB = valloc(2); vOM = valloc(1)
    vS1 = valloc(64, 4)
    vFIFO = valloc(4 * cfg.nfifo, 4)
    vRAW = valloc(4 * cfg.nraw, 4)
    vOUT = valloc(16, 4)
    NT = 48; vT = valloc(NT, 2)
    NE = 24; vE = valloc(NE, 2)
    aS0, aS2, aS3, aB = 0, 64, 128, 192
    accreg = {"pa": ("a", aS0), "0": ("a", aS0), "ma": ("v", vS1), "c": ("v", vS1), "pb": ("a", aS2), "mb": ("a", aS3), "i": ("a", aS3)}
    sX, sU, sO, sW = 4, 8, 12, 20
    sBO = 16; sWV = 17; sNQ = 18; sFAIL = 19
    sST = 24
    sNON = 32
    sDBG = 34
    sTMP = 36
    sSTAMP = 48
    sCONST0 = 80 if cfg.stamps else 48
    ctab = {}
    def cs(v):
        u = f2u(v)
        if u not in ctab:
            ctab[u] = sCONST0 + len(ctab); assert ctab[u] <= 101
        return ctab[u]
    nstamp = [4]
    def stamp(i=None):
        if cfg.stamps:
            if i is None:
                i = nstamp[0]; nstamp[0] += 1
            assert sSTAMP + 2 * i + 1 < sCONST0
            A(f"s_memtime s[{sSTAMP + 2 * i}:{sSTAMP + 2 * i + 1}]")

    def V(lst, txt, rd, wr, kind="V"):
        op = Op(txt, kind, rd=rd, wr=wr); lst.append(op); return op
    def pr(r): return f"v[{r}:{r + 1}]"
    def R2(*rs): return [f"v{r + i}" for r in rs for i in range(2)]
    def fma2(lst, pk, d, x, k, y):
        if pk:
            s = cs(abs(k)); e = s & ~1; o = s & 1; n = 1 if k < 0 else 0
            V(lst, f"v_pk_fma_f32 {pr(d)}, {pr(x)}, s[{e}:{e + 1}], {pr(y)} op_sel:[0,{o},0] op_sel_hi:[1,{o},1] neg_lo:[{n},0,0] neg_hi:[{n},0,0]", R2(x, y), R2(d))
        else:
            for i in range(2):
                if d == y:
                    V(lst, f"v_fmac_f32 v{d + i}, s{cs(k)}, v{x + i}", [f"v{x + i}", f"v{d + i}"], [f"v{d + i}"])
                else:
                    V(lst, f"v_fma_f32 v{d + i}, {'-' if k < 0 else ''}v{x + i}, s{cs(abs(k))}, v{y + i}", [f"v{x + i}", f"v{y + i}"], [f"v{d + i}"])
    def mul2(lst, pk, d, x, k):
        if pk:
            s = cs(abs(k)); e = s & ~1; o = s & 1; n = 1 if k < 0 else 0
            V(lst, f"v_pk_mul_f32 {pr(d)}, {pr(x)}, s[{e}:{e + 1}] op_sel:[0,{o}] op_sel_hi:[1,{o}] neg_lo:[{n},0] neg_hi:[{n},0]", R2(x), R2(d))
        else:
            for i in range(2):
                V(lst, f"v_mul_f32 v{d + i}, s{cs(k)}, v{x + i}", [f"v{x + i}"], [f"v{d + i}"])
    def add2(lst, pk, d, x, y, sub=False):
        if pk:
            n = 1 if sub else 0
            V(lst, f"v_pk_add_f32 {pr(d)}, {pr(x)}, {pr(y)} neg_lo:[0,{n}] neg_hi:[0,{n}]", R2(x, y), R2(d))
        else:
            for i in range(2):
                V(lst, f"v_{'sub' if sub else 'add'}_f32 v{d + i}, v{x + i}, v{y + i}", [f"v{x + i}", f"v{y + i}"], [f"v{d + i}"])

    uRAW = vS1; uOUT = vS1 + 32; uK = vE; uLD = vE + 8; uST = vE + 9; uSTI = vE + 10; uFL = vE + 11; uNON = vE + 12; uPOLL = vE + 14
    PRODS = P1 + P2
    def prod_loads(sl):
        t = sTMP
        A(f"s_and_b32 s{t}, s{sl}, 3"); A(f"s_lshl_b32 s{t}, s{t}, 7")
        A(f"s_bfe_u32 s{t + 1}, s{sl}, 0x10002"); A(f"s_lshl_b32 s{t + 1}, s{t + 1}, 6"); A(f"s_add_u32 s{t}, s{t}, s{t + 1}")
        A(f"s_lshr_b32 s{t + 1}, s{sl}, 3"); A(f"s_lshl_b32 s{t + 1}, s{t + 1}, 13"); A(f"s_add_u32 s{sST}, s{t}, s{t + 1}")
        for i in range(1, 8):
            A(f"s_add_u32 s{sST + i}, s{sST}, {(i // 2) * 262144 + (i % 2) * 4096}")
        for dd in range(8):
            for k in range(4):
                r = uRAW + k * 8 + dd
                E.emit(Op(f"buffer_load_short_d16_hi v{r}, v{uLD}, s[{sW}:{sW + 3}], s{sST + k * 2 + dd // 4} offen offset:{(dd % 4) * 1024}", "G", wr=[f"v{r}"]))
    def prod_compute(sl):
        t = sTMP
        A(f"s_and_b32 s{t}, s{sl}, 7"); A(f"s_lshl_b32 s{t + 1}, s{t}, 1"); A(f"s_and_b32 s{t + 1}, s{t + 1}, 6"); A(f"s_lshr_b32 s{t}, s{t}, 2")
        A(f"s_add_u32 s{t}, s{t}, s{t + 1}"); A(f"s_mul_i32 s{t}, s{t}, {4 * STREAM}")
        A(f"s_bfe_u32 s{t + 1}, s{sl}, 0x20003"); A(f"s_lshl_b32 s{t + 1}, s{t + 1}, 8"); A(f"s_add_u32 s{t}, s{t}, s{t + 1}")
        A(f"s_bfe_u32 s{t + 1}, s{sl}, 0x10005")
        A(f"s_lshr_b32 s{t + 2}, s{sl}, 6")
        ops = []
        T_ = vT
        for w in range(4):
            g = [uRAW + k * 8 + 2 * w for k in range(4)]
            def fin(pi, x):
                kr = uK + pi; e = kr & ~1; o = kr & 1
                V(ops, f"v_pk_mul_f32 {pr(T_ + 10)}, {pr(x)}, {pr(e)} op_sel:[0,{o}] op_sel_hi:[1,{o}]", R2(x), R2(T_ + 10))
                V(ops, f"v_cvt_pk_bf16_f32 v{uOUT + 4 * pi + w}, v{T_ + 10}, v{T_ + 11}", R2(T_ + 10), [f"v{uOUT + 4 * pi + w}"])
            for pi, p in ((0, ca), (2, cb)):
                fma2(ops, True, T_, g[2], p * p, g[0]); fma2(ops, True, T_ + 2, g[3], p * p, g[1])
                fma2(ops, True, T_ + 4, T_ + 2, p, T_); fma2(ops, True, T_ + 6, T_ + 2, -p, T_)
                fin(pi, T_ + 4); fin(pi + 1, T_ + 6)
            fma2(ops, True, T_ + 8, g[3], cc, g[2]); fma2(ops, True, T_ + 8, T_ + 8, cc, g[1]); fma2(ops, True, T_ + 8, T_ + 8, cc, g[0])
            fin(4, T_ + 8); fin(5, g[0]); fin(6, g[3])
        first = True
        for o in ops:
            E.emit(o)
            if first:
                first = False
                for pi, k in enumerate(PRODS):
                    base = tpos[st.index((k, 0, 0))]; mul = tpos[st.index((k, 1, 0))] - base
                    for c in range(4):
                        for kk in range(2):
                            assert tpos[st.index((k, c, kk))] == base + mul * c + kk * NG[k]
                    A(f"s_mul_i32 s{t + 3}, s{t + 2}, {mul * 1024}"); A(f"s_mul_i32 s{t + 4}, s{t + 1}, {NG[k] * 1024}")
                    A(f"s_add_u32 s{t + 3}, s{t + 3}, s{t + 4}"); A(f"s_add_u32 s{t + 3}, s{t + 3}, {base * 1024}")
                    A(f"s_add_u32 s{t + 5 + pi}, s{t + 3}, s{t}")
        stores = []
        for pi, k in enumerate(PRODS):
            b = uOUT + 4 * pi
            o = Op(f"buffer_store_dwordx4 {rng('v', b, 4)}, v{uSTI if k == 'i' else uST}, s[{sU}:{sU + 3}], s{t + 5 + pi} offen sc1", "S", rd=regs("v", b, 4))
            E.emit(o); stores.append(o)
        return stores

    mf = []; frags = []; acc_touch = {}; buse = {}; started = set(); step_start = []
    for si, (k, c, kk) in enumerate(st):
        step_start.append(len(mf))
        pre, base = accreg[k]
        ng = NG[k]
        for j in range(MB + ng - 1):
            fr = vFIFO + 4 * (len(frags) % cfg.nfifo)
            first = len(mf)
            for a in range(max(0, j - MB + 1), min(ng - 1, j) + 1):
                for eb in range(2):
                    u = (j - a) * 2 + eb
                    br = aB + ((si % 2) * 8 + a * 2 + eb) * 4
                    d = base + 4 * u; key = (pre, base, u); D = rng(pre, d, 4)
                    fresh = key not in started; started.add(key)
                    op = Op(f"v_mfma_f32_16x16x32_bf16 {D}, {rng('a', br, 4)}, {rng('v', fr, 4)}, {'0' if fresh else D}", "M",
                            rd=regs("a", br, 4) + regs("v", fr, 4) + ([] if fresh else regs(pre, d, 4)),
                            wr=regs(pre, d, 4), srcc=([] if fresh else regs(pre, d, 4)))
                    acc_touch.setdefault((k, u), []).append(len(mf))
                    bu = buse.setdefault((si, a, eb), [len(mf), len(mf)]); bu[1] = len(mf)
                    mf.append(op)
            frags.append((si, j, first, len(mf) - 1, fr))
    NM = len(mf); step_start.append(NM)
    chunks = []; si = 0
    for ph in (P1, P2):
        for c in range(4):
            chunks.append((ph, c, si, 2 * len(ph))); si += 2 * len(ph)
    chunk_of_step = {s_: ci for ci, (ph, c, s0, ns) in enumerate(chunks) for s_ in range(s0, s0 + ns)}

    bstream = []
    lastuse = {}
    for si in range(nst):
        ng = NG[st[si][0]]
        for a in range(ng):
            t = tpos[si] + a
            if t % 4 == 0 and t > 0:
                bstream.append(Op(f"s_add_u32 s{sBO}, s{sBO}, 4096", "A", earliest=bstream[-1].earliest))
            for eb in range(2):
                br = aB + ((si % 2) * 8 + a * 2 + eb) * 4
                first = buse[(si, a, eb)][0]
                prev = lastuse.get(br, -1)
                tgt = step_start[si] - cfg.look_b + (a * 2 + eb) * 7
                e = max(prev, tgt)
                if e < 0: e = -1
                bstream.append(Op(f"buffer_load_dwordx4 {rng('a', br, 4)}, v{vBO + eb}, s[{sU}:{sU + 3}], s{sBO} offen offset:{(t % 4) * 1024} sc1",
                                  "G", wr=regs("a", br, 4), earliest=e, deadline=max(e, first - 24)))
                lastuse[br] = buse[(si, a, eb)][1]

    RG = [0, 2, 6, 10, 14, 18]
    def xaddr(rho, c):
        gi = max(i for i in range(6) if RG[i] <= rho)
        return vXO + gi, (rho - RG[gi]) * 1024 + c * 128

    barrier = [Op("s_barrier", "B") for _ in chunks]
    raw_free = [(vRAW + 4 * i, None) for i in range(cfg.nraw)]
    extra_raw = [(vFIFO + 4 * i, None) for i in range(cfg.nfifo)]
    xstream = []; tstreams = []; round_end = []
    T = Pool([vT + 2 * i for i in range(NT // 2)])
    for ci, (ph, c, s0, ns) in enumerate(chunks):
        ts = []; setb = ci % 2; p2 = ph is P2; pk = cfg.pk and ci == 0
        rows = {}
        def load_row(rho):
            tmp = ci == 0 and bool(extra_raw)
            r, last = (extra_raw if tmp else raw_free).pop(0)
            va, off = xaddr(rho, c)
            op = Op(f"buffer_load_dwordx4 {rng('v', r, 4)}, v{va}, s[{sX}:{sX + 3}], 0 offen offset:{off}", "G",
                    wr=regs("v", r, 4), after=([last] if last else []))
            op.minage = ci; xstream.append(op); rows[rho] = (r, op, tmp)
        def unpack(rho, w):
            r, lop, _ = rows[rho]; t = T.get()
            V(ts, f"v_lshlrev_b32 v{t}, 16, v{r + w}", [f"v{r + w}"], [f"v{t}"]).after.append(lop)
            V(ts, f"v_and_b32 v{t + 1}, s{cs_mask}, v{r + w}", [f"v{r + w}"], [f"v{t + 1}"]).after.append(lop)
            return t
        cs_mask = ctab.setdefault(0xffff0000, sCONST0 + len(ctab))
        carry = {}
        for n in range(4):
            if p2:
                newrows = ([0, 1, 2] if n == 0 else []) + [4 * n + 3 + i for i in range(4)]
            else:
                newrows = ([1] if n == 0 else []) + [4 * n + 2 + i for i in range(4)]
            for rho in newrows: load_row(rho)
            for w in range(4):
                if p2:
                    if n == 0: carry[w] = [unpack(i, w) for i in range(3)]
                    d0, d1, d2 = carry[w]
                    d3 = unpack(4 * n + 3, w); d5 = unpack(4 * n + 5, w)
                    fma2(ts, pk, d3, d3, k1, d5); fma2(ts, pk, d3, d1, k0, d3)
                    d4 = unpack(4 * n + 4, w); d6 = unpack(4 * n + 6, w)
                    fma2(ts, pk, d0, d0, k0, d4); fma2(ts, pk, d1, d6, -1 / cc, d3)
                    fma2(ts, pk, d0, d2, k1, d0); fma2(ts, pk, d1, d4, -k1 / cc, d1)
                    fma2(ts, pk, d0, d3, -1 / cc, d0); fma2(ts, pk, d1, d2, -k0 / cc, d1)
                    res = [d3, d0, d1]; T.put(d2)
                    carry[w] = [d4, d5, d6]
                else:
                    if n == 0: carry[w] = [unpack(1, w)]
                    d1 = carry[w][0]
                    d2 = unpack(4 * n + 2, w); d3 = unpack(4 * n + 3, w); d4 = unpack(4 * n + 4, w); d5 = unpack(4 * n + 5, w)
                    g4 = T.get()
                    fma2(ts, pk, g4, d4, -cc, d5); fma2(ts, pk, d4, d3, -cc, d4); fma2(ts, pk, d3, d2, -cc, d3); fma2(ts, pk, d2, d1, -cc, d2)
                    g1, g2, g3 = d2, d3, d4
                    hA1 = d1; hA2 = T.get()
                    fma2(ts, pk, hA1, g1, -cb * cb, g3); fma2(ts, pk, hA2, g2, -cb * cb, g4)
                    fma2(ts, pk, g3, g1, -ca * ca, g3); fma2(ts, pk, g4, g2, -ca * ca, g4)
                    fma2(ts, pk, g1, hA1, ca, hA2); fma2(ts, pk, hA2, hA1, -ca, hA2)
                    fma2(ts, pk, g2, g3, cb, g4); fma2(ts, pk, g4, g3, -cb, g4)
                    res = [g1, hA2, g2, g4]; T.put(hA1); T.put(g3)
                    carry[w] = [d5]
                for pi, r in enumerate(res):
                    V(ts, f"v_cvt_pk_bf16_f32 v{vOUT + 4 * pi + w}, v{r}, v{r + 1}", R2(r), [f"v{vOUT + 4 * pi + w}"]); T.put(r)
            last = ts[-1]
            for rho in newrows:
                r, op, tmp = rows.pop(rho)
                if not tmp: raw_free.append((r, last))
            for pi in range(len(ph)):
                ts.append(Op(f"ds_write_b128 v{vWB + setb}, {rng('v', vOUT + 4 * pi, 4)} offset:{pi * US + ((n >> 1) * 32 + (n & 1)) * 16}", "W",
                             rd=regs("v", vOUT + 4 * pi, 4), after=([barrier[ci - 1]] if ci >= 1 else [])))
            if ci == 0: round_end.append(len(ts))
        for v_ in carry.values():
            for r in v_: T.put(r)
        barrier[ci].after = [ts[-1]]
        tstreams.append(ts)

    vstream = []; bar_time = {}
    for fi, (si, j, first, last, fr) in enumerate(frags):
        k, c, kk = st[si]; ci = chunk_of_step[si]; ph = chunks[ci][0]
        prev = frags[fi - cfg.nfifo][3] if fi >= cfg.nfifo else -1
        e = max(prev, first - cfg.look_v)
        if ci not in bar_time:
            be = (vstream[-1].earliest + cfg.bar_delay) if vstream else -1
            bar_time[ci] = be; barrier[ci].earliest = be; barrier[ci].deadline = be
            vstream.append(barrier[ci])
        jp = j & 7
        off = ph.index(k) * US + kk * 4 * PLB + ((jp >> 1) * 32 + (jp & 1) + 2 * (j >> 3)) * 16
        vstream.append(Op(f"ds_read_b128 {rng('v', fr, 4)}, v{vRB + ci % 2} offset:{off}", "R", wr=regs("v", fr, 4),
                          earliest=e, deadline=max(e, first - 6), after=[barrier[ci]]))
    for ci in range(1, 8):
        ts = tstreams[ci]
        t_lo = bar_time[ci - 1] + 1; t_hi = bar_time[ci] - 12
        if ci == 4: t_hi -= 60
        tot = sum(COST[o.kind] for o in ts); acc = 0
        for o in ts:
            o.earliest = t_lo + (acc * (t_hi - t_lo)) // tot; acc += COST[o.kind]; o.deadline = bar_time[ci]

    HZ = 9
    EP = Pool([vE + 2 * i for i in range(NE // 2)])
    stg = [EP.free.pop(), EP.free.pop()]
    def accrd(lst, d, areg):
        for i in range(2): V(lst, f"v_accvgpr_read_b32 v{d + i}, a{areg + i}", [f"a{areg + i}"], [f"v{d + i}"])
    def accwr(lst, areg, s_):
        for i in range(2): V(lst, f"v_accvgpr_write_b32 a{areg + i}, v{s_ + i}", [f"v{s_ + i}"], [f"a{areg + i}"])
    def basis_unit(u, pk):
        ops = []
        for hf in range(2):
            o = 4 * u + 2 * hf; z = vS1 + o
            x0 = EP.get(); x2 = EP.get(); x3 = EP.get(); sa = EP.get(); sb = EP.get()
            accrd(ops, x0, aS0 + o); accrd(ops, x2, aS2 + o); accrd(ops, x3, aS3 + o)
            add2(ops, pk, sa, x0, z); add2(ops, pk, z, x0, z, True)
            add2(ops, pk, sb, x2, x3); add2(ops, pk, x3, x2, x3, True)
            mul2(ops, pk, x0, z, ca * ca - cc * cc)
            mul2(ops, pk, x2, sa, ca)
            fma2(ops, pk, z, x3, cb, z)
            fma2(ops, pk, x0, x3, cb * (cb * cb - cc * cc), x0)
            fma2(ops, pk, x2, sb, cb * cb, x2)
            fma2(ops, pk, sb, sa, 1 / ca, sb)
            accwr(ops, aS3 + o, x0)
            fma2(ops, pk, x2, z, -cc, x2)
            fma2(ops, pk, sb, z, -1 / cc, sb)
            accwr(ops, aS2 + o, x2); accwr(ops, aS0 + o, sb)
            for r in (x0, x2, x3, sa, sb): EP.put(r)
        return ops
    def epi_unit(yi, m, pk, sg):
        ops = []
        z = [vS1 + 8 * m + 2 * i for i in range(4)]
        e = [EP.get() for _ in range(4)]
        if yi == 1:
            src = z
        else:
            ab = {0: aS0, 2: aS2, 3: aS3}[yi] + 8 * m; kz = {0: 1 / cc, 2: cc, 3: cc * cc}[yi]
            for i in range(4): accrd(ops, e[i], ab + 2 * i)
            for i in range(4): fma2(ops, pk, e[i], z[i], kz, e[i])
            src = e
        for i in range(4):
            V(ops, f"v_min_f32 v{e[i // 2] + i % 2}, s{cs(30.0)}, v{src[i // 2] + i % 2}", [f"v{src[i // 2] + i % 2}"], [f"v{e[i // 2] + i % 2}"])
        for i in range(4):
            r = e[i // 2] + i % 2; V(ops, f"v_exp_f32 v{r}, v{r}", [f"v{r}"], [f"v{r}"], "T")
        for i in range(4):
            r = e[2 + i // 2] + i % 2; s_ = src[2 + i // 2] + i % 2; V(ops, f"v_exp_f32 v{r}, v{s_}", [f"v{s_}"], [f"v{r}"], "T")
        p = [EP.get(), EP.get()]
        for hf in range(2):
            if pk: V(ops, f"v_pk_add_f32 {pr(p[hf])}, {pr(e[hf])}, 1.0 op_sel_hi:[1,0]", R2(e[hf]), R2(p[hf]))
            else:
                for i in range(2): V(ops, f"v_add_f32 v{p[hf] + i}, 1.0, v{e[hf] + i}", [f"v{e[hf] + i}"], [f"v{p[hf] + i}"])
        for hf in range(2):
            if pk: V(ops, f"v_pk_fma_f32 {pr(p[hf])}, {pr(p[hf])}, {pr(e[2 + hf])}, {pr(p[hf])}", R2(p[hf], e[2 + hf]), R2(p[hf]))
            else:
                for i in range(2): V(ops, f"v_fmac_f32 v{p[hf] + i}, v{p[hf] + i}, v{e[2 + hf] + i}", [f"v{p[hf] + i}", f"v{e[2 + hf] + i}"], [f"v{p[hf] + i}"])
        for i in range(4):
            r = p[i // 2] + i % 2; V(ops, f"v_rcp_f32 v{r}, v{r}", [f"v{r}"], [f"v{r}"], "T")
        for hf in range(2):
            if pk: V(ops, f"v_pk_fma_f32 {pr(p[hf])}, {pr(e[hf])}, {pr(p[hf])}, {pr(p[hf])} neg_lo:[1,0,0] neg_hi:[1,0,0]", R2(p[hf], e[hf]), R2(p[hf]))
            else:
                for i in range(2): V(ops, f"v_fma_f32 v{p[hf] + i}, -v{e[hf] + i}, v{p[hf] + i}, v{p[hf] + i}", [f"v{p[hf] + i}", f"v{e[hf] + i}"], [f"v{p[hf] + i}"])
        for hf in range(2):
            V(ops, f"v_cvt_pk_bf16_f32 v{sg + hf}, v{p[hf]}, v{p[hf] + 1}", R2(p[hf]), [f"v{sg + hf}"])
        ops.append(Op(f"buffer_store_dwordx2 {pr(sg)}, v{vOM}, s[{sO}:{sO + 3}], s{sST + m} offen offset:{yi * 1024}", "S", rd=R2(sg)))
        for r in e + p: EP.put(r)
        return ops
    items = []
    for u in range(2 * MB):
        items.append(("basis", u, max(acc_touch[(k, u)][-1] for k in P1) + HZ, acc_touch[("c", u)][0] - 2))
    for yi, k in ((1, "c"), (2, "c"), (0, "0"), (3, "i")):
        for m in range(MB):
            items.append(("epi", (yi, m), max(acc_touch[(kx, u)][-1] for kx in (k, "c") for u in (2 * m, 2 * m + 1)) + HZ, None))
    icnt = [0]
    def expand(pk):
        kind, arg, lo, hi = items.pop(0)
        icnt[0] += 1
        ops = basis_unit(arg, pk) if kind == "basis" else epi_unit(arg[0], arg[1], pk, stg[icnt[0] % 2])
        for o in ops: o.earliest = lo; o.deadline = hi
        return ops

    A(f".globl {KN}"); A(".p2align 8"); A(f".type {KN},@function"); A(f"{KN}:")
    A("s_cmp_lt_u32 s2, 256"); A("s_cbranch_scc1 Lm_go"); A("s_endpgm"); A("Lm_go:")
    A("s_load_dwordx2 s[4:5], s[0:1], 0"); A(f"s_load_dwordx2 s[{sW}:{sW + 1}], s[0:1], 8")
    A("s_load_dwordx2 s[12:13], s[0:1], 16"); A(f"s_load_dwordx2 s[{sDBG}:{sDBG + 1}], s[0:1], 24")
    A("s_load_dwordx2 s[8:9], s[0:1], 32")
    A(f"s_memrealtime s[{sNON}:{sNON + 1}]")
    if cfg.stamps:
        A(f"s_memrealtime s[{sSTAMP}:{sSTAMP + 1}]"); stamp(2)
    t0 = vT
    if cfg.prefetch_code:
        A(f"s_getpc_b64 s[{sTMP + 10}:{sTMP + 11}]"); A("Lm_pc:")
        A(f"v_lshlrev_b32 v{t0 + 8}, 5, v0")
        E.emit(Op(f"global_load_dword v{vOUT}, v{t0 + 8}, s[{sTMP + 10}:{sTMP + 11}]", "G", wr=[f"v{vOUT}"]))
    for i in range(32): A(f"v_mov_b32 v{uRAW + i}, 0")
    A(f"v_and_b32 v{t0 + 2}, 63, v0"); A(f"v_lshrrev_b32 v{t0 + 3}, 6, v0")
    A(f"v_lshrrev_b32 v{t0 + 4}, 5, v{t0 + 2}"); A(f"v_and_b32 v{t0 + 5}, 31, v0")
    A(f"v_lshlrev_b32 v{uLD}, 20, v{t0 + 3}"); A(f"v_lshl_add_u32 v{uLD}, v{t0 + 4}, 9, v{uLD}"); A(f"v_lshl_add_u32 v{uLD}, v{t0 + 5}, 1, v{uLD}")
    A(f"s_mov_b32 s{sW + 2}, 3932160"); A(f"s_mov_b32 s{sW + 3}, 0x20000")
    A("s_waitcnt lgkmcnt(0)")
    prod_loads(2)
    t = sTMP
    if cfg.xcdmap == 0:
        A(f"s_and_b32 s{t}, s2, 7"); A(f"s_lshr_b32 s{sNQ}, s2, 3"); A(f"s_lshl_b32 s{t}, s{t}, 3"); A(f"s_lshr_b32 s{t + 1}, s{sNQ}, 2")
        A(f"s_add_u32 s{t}, s{t}, s{t + 1}"); A(f"s_and_b32 s{sNQ}, s{sNQ}, 3")
    elif cfg.xcdmap == 1:
        A(f"s_and_b32 s{sNQ}, s2, 3"); A(f"s_lshr_b32 s{t}, s2, 2")
    else:
        A(f"s_and_b32 s{sNQ}, s2, 1"); A(f"s_bfe_u32 s{t + 1}, s2, 0x10003"); A(f"s_lshl_b32 s{t + 1}, s{t + 1}, 1"); A(f"s_add_u32 s{sNQ}, s{sNQ}, s{t + 1}")
        A(f"s_bfe_u32 s{t}, s2, 0x20001"); A(f"s_lshl_b32 s{t}, s{t}, 4"); A(f"s_lshr_b32 s{t + 1}, s2, 4"); A(f"s_add_u32 s{t}, s{t}, s{t + 1}")
    A(f"s_lshr_b32 s{t + 1}, s{t}, 5"); A(f"s_mul_i32 s{t + 1}, s{t + 1}, 8192000")
    A(f"s_bfe_u32 s{t + 2}, s{t}, 0x10004"); A(f"s_lshl_b32 s{t + 2}, s{t + 2}, 9"); A(f"s_add_u32 s{t + 1}, s{t + 1}, s{t + 2}")
    A(f"s_and_b32 s{t + 2}, s{t}, 15"); A(f"s_mul_i32 s{t + 2}, s{t + 2}, {500 * 1024}")
    A(f"s_sub_u32 s{t + 3}, s{t + 2}, {14 * 1024}")
    A(f"v_lshrrev_b32 v{t0}, 3, v0"); A(f"v_and_b32 v{t0 + 1}, 7, v0")
    A(f"v_lshlrev_b32 v{t0 + 6}, 14, v{t0}"); A(f"v_lshl_add_u32 v{t0 + 6}, v{t0 + 1}, 4, v{t0 + 6}")
    A(f"v_add_u32 v{vXO}, s{t + 3}, v{t0 + 6}")
    for i in range(1, 6): A(f"v_add_u32 v{vXO + i}, {RG[i] * 1024}, v{vXO}")
    A(f"s_sub_u32 s6, 16384000, s{t + 1}"); A("s_mov_b32 s7, 0x20000")
    A(f"s_add_u32 s4, s4, s{t + 1}"); A("s_addc_u32 s5, s5, 0")
    n0 = sum(1 for o in xstream if o.minage == 0)
    for o in xstream[:n0]: E.emit(o)
    xi = n0
    A("s_cmp_lg_u32 s2, 0"); A("s_cbranch_scc1 Lm_nn")
    A(f"s_or_b32 s{sNON}, s{sNON}, 1"); A(f"v_mov_b32 v{uNON}, s{sNON}"); A(f"v_mov_b32 v{uNON + 1}, s{sNON + 1}"); A(f"v_mov_b32 v{t0 + 7}, 0")
    A("v_cmp_eq_u32 vcc, 0, v0"); A(f"s_and_saveexec_b64 s[{t + 4}:{t + 5}], vcc"); A("s_cbranch_execz Lm_n1")
    if not cfg.force_fallback:
        A(f"global_store_dwordx2 v{t0 + 7}, {pr(uNON)}, s[{sDBG}:{sDBG + 1}] sc1")
    A("Lm_n1:"); A(f"s_mov_b64 exec, s[{t + 4}:{t + 5}]"); A("Lm_nn:")
    if cfg.prefetch_code:
        A(f"s_lshr_b32 s{t + 4}, s2, 3"); A(f"s_lshl_b32 s{t + 4}, s{t + 4}, 12")
        A(f"v_lshl_add_u32 v{t0 + 8}, v0, 4, s{t + 4}")
        A(f"v_min_u32 v{t0 + 8}, Lm_last-Lm_pc-16, v{t0 + 8}"); A(f"v_and_b32 v{t0 + 8}, 0xfffffff0, v{t0 + 8}")
        E.emit(Op(f"global_load_dword v{vOUT + 1}, v{t0 + 8}, s[{sTMP + 10}:{sTMP + 11}]", "G", wr=[f"v{vOUT + 1}"]))
    A(f"s_add_u32 s12, s12, s{t + 1}"); A("s_addc_u32 s13, s13, 0")
    A(f"s_add_u32 s14, s{t + 2}, {500 * 1024 - 512}"); A("s_mov_b32 s15, 0x20000")
    A(f"s_mov_b32 s10, {UBYTES + 256 * 128}"); A("s_mov_b32 s11, 0x20000")
    A(f"v_and_b32 v{t0 + 6}, 15, v0"); A(f"v_bfe_u32 v{t0 + 7}, v0, 4, 2")
    A(f"s_lshl_b32 s{t + 3}, s{sNQ}, 7"); A(f"s_add_u32 s{t + 3}, s{t + 3}, s{t + 2}")
    A(f"v_lshlrev_b32 v{vOM}, 15, v{t0 + 6}"); A(f"v_lshl_add_u32 v{vOM}, v{t0 + 3}, 5, v{vOM}"); A(f"v_lshl_add_u32 v{vOM}, v{t0 + 7}, 3, v{vOM}")
    A(f"v_add_u32 v{vOM}, s{t + 3}, v{vOM}")
    A(f"v_mul_u32_u24 v{vRB}, {PLB}, v{t0 + 7}"); A(f"v_lshl_add_u32 v{vRB}, v{t0 + 6}, 5, v{vRB}"); A(f"v_add_u32 v{vRB + 1}, {4 * US}, v{vRB}")
    A(f"v_mul_u32_u24 v{vWB}, {PLB}, v{t0 + 1}"); A(f"v_and_b32 v{t0 + 8}, 1, v{t0}"); A(f"v_lshl_add_u32 v{vWB}, v{t0 + 8}, 10, v{vWB}")
    A(f"v_lshrrev_b32 v{t0 + 8}, 1, v{t0}"); A(f"v_lshl_add_u32 v{vWB}, v{t0 + 8}, 5, v{vWB}"); A(f"v_add_u32 v{vWB + 1}, {4 * US}, v{vWB}")
    A(f"s_lshl_b32 s{t + 3}, s{sNQ}, 2"); A(f"v_add_u32 v{t0 + 8}, s{t + 3}, v{t0 + 3}"); A(f"v_mul_u32_u24 v{t0 + 8}, {2 * STREAM}, v{t0 + 8}")
    A(f"v_lshl_add_u32 v{vBO}, v{t0 + 2}, 4, v{t0 + 8}"); A(f"v_add_u32 v{vBO + 1}, {STREAM}, v{vBO}")
    A(f"v_bfe_u32 v{t0 + 8}, v0, 4, 1"); A(f"v_lshl_add_u32 v{t0 + 8}, v{t0 + 8}, 1, v{t0 + 4}"); A(f"v_mul_u32_u24 v{uST}, {STREAM}, v{t0 + 8}")
    A(f"v_lshl_add_u32 v{uST}, v{t0 + 6}, 4, v{uST}"); A(f"v_lshl_add_u32 v{uST}, v{t0 + 3}, 10, v{uST}")
    A(f"v_cmp_eq_u32 vcc, 3, v{t0 + 3}"); A(f"v_mov_b32 v{t0 + 8}, 0x40000000"); A("s_nop 1"); A(f"v_cndmask_b32 v{uSTI}, v{uST}, v{t0 + 8}, vcc")
    A(f"v_cvt_f32_u32 v{t0 + 8}, v{t0 + 4}"); A(f"v_add_f32 v{t0 + 8}, -2.0, v{t0 + 8}")
    for pi, k in enumerate(PRODS): A(f"v_mul_f32 v{uK + pi}, {f2u(C['K'][k]):#x}, v{t0 + 8}")
    A(f"s_lshl_b32 s{t + 3}, s{sNQ}, 13"); A(f"s_add_u32 s{t + 3}, s{t + 3}, {FLAGOFF}"); A(f"v_lshl_add_u32 v{uFL}, v{t0 + 2}, 7, s{t + 3}")
    A(f"v_readfirstlane_b32 s{sWV}, v{t0 + 3}")
    A(f"s_mov_b32 s{sBO}, 0"); A(f"s_mov_b32 s{sFAIL}, 0")
    A("CONSTS_HERE")
    sv = cfg.age_vm; cfg.age_vm = 10 ** 9
    stamp()
    ust = prod_compute(2)
    A(f"v_mov_b32 v{uPOLL}, 0")
    non = Op(f"global_load_dwordx2 {pr(uNON)}, v{uPOLL}, s[{sDBG}:{sDBG + 1}] sc1", "G", wr=R2(uNON)); E.emit(non)
    stamp()
    for i in range(8): A(f"s_mov_b32 s{sST + i}, {i * 4096}")
    STAT = 8 * US + 64
    A(f"v_mov_b32 v{uPOLL + 1}, {STAT}"); E.emit(Op(f"ds_write_b32 v{uPOLL + 1}, v{uPOLL}", "W"))
    while xi < len(xstream) and all(a.pos is not None for a in xstream[xi].after):
        E.emit(xstream[xi]); xi += 1
    ts0 = tstreams[0]
    for o in ts0[:round_end[2]]: E.emit(o)
    E.emit_wait(E.vm.index(non), None, extend=False)
    E.wait_all(vm=False)
    A("s_barrier")
    stamp()
    A(f"s_mov_b32 s{t}, 0")
    A("Lm_nw:")
    A(f"v_readfirstlane_b32 s{sNON}, v{uNON}"); A(f"v_readfirstlane_b32 s{sNON + 1}, v{uNON + 1}")
    A(f"s_cmp_lg_u32 s{sNON}, 0"); A("s_cbranch_scc1 Lm_ng")
    A(f"s_add_u32 s{t}, s{t}, 1"); A(f"s_cmp_gt_u32 s{t}, {cfg.poll_max}"); A("s_cbranch_scc1 Lm_nf")
    A(f"global_load_dwordx2 {pr(uNON)}, v{uPOLL}, s[{sDBG}:{sDBG + 1}] sc1"); A("s_waitcnt vmcnt(0)"); A("s_branch Lm_nw")
    A("Lm_nf:"); A(f"s_mov_b32 s{sFAIL}, 1"); A("s_branch Lm_fd")
    A("Lm_ng:")
    A(f"s_cmp_lg_u32 s{sWV}, 0"); A("s_cbranch_scc1 Lm_fd")
    A(f"s_and_b32 s{t}, s2, 3"); A(f"s_lshl_b32 s{t}, s{t}, 13"); A(f"s_lshr_b32 s{t + 1}, s2, 2"); A(f"s_lshl_b32 s{t + 1}, s{t + 1}, 7")
    A(f"s_add_u32 s{t}, s{t}, s{t + 1}"); A(f"s_add_u32 s{t}, s{t}, {FLAGOFF}")
    A("s_mov_b64 exec, 1")
    A(f"buffer_store_dwordx2 {pr(uNON)}, v{uPOLL}, s[{sU}:{sU + 3}], s{t} offen sc1")
    A("s_mov_b64 exec, -1")
    A("Lm_fd:")
    for o in ts0[round_end[2]:]: E.emit(o)
    stamp()
    E.wait_all(lg=False)
    A(f"s_cmp_lg_u32 s{sFAIL}, 0"); A("s_cbranch_scc1 Lm_pf")
    A(f"s_mov_b32 s{t}, 0")
    A("Lm_pw:")
    A(f"buffer_load_dwordx2 {pr(uNON)}, v{uFL}, s[{sU}:{sU + 3}], 0 offen sc1"); A("s_waitcnt vmcnt(0)")
    A(f"v_cmp_ne_u64 vcc, s[{sNON}:{sNON + 1}], {pr(uNON)}"); A("s_nop 1"); A("s_cmp_eq_u64 vcc, 0"); A("s_cbranch_scc1 Lm_pg")
    A(f"s_add_u32 s{t}, s{t}, 1"); A(f"s_cmp_le_u32 s{t}, {cfg.poll_max}"); A("s_cbranch_scc1 Lm_pw")
    A("Lm_pf:")
    A(f"v_mov_b32 v{uPOLL}, 1"); A(f"ds_write_b32 v{uPOLL + 1}, v{uPOLL}"); A("s_branch Lm_ps")
    A("Lm_pg:")
    stamp()
    bi = 0
    b0 = []
    while bstream[bi].earliest < 0:
        b0.append(bstream[bi].txt); E.emit(bstream[bi]); bi += 1
    A("Lm_ps:")
    A("s_waitcnt lgkmcnt(0)"); E.lg.clear()
    vi = 0
    E.emit(vstream[0]); vi = 1
    A(f"ds_read_b32 v{uPOLL}, v{uPOLL + 1}")
    A("s_waitcnt lgkmcnt(0)")
    A(f"v_readfirstlane_b32 s{t}, v{uPOLL}"); A(f"s_cmp_lg_u32 s{t}, 0"); A("s_cbranch_scc1 Lm_fall")
    A("Lm_resume:")
    cfg.age_vm = sv
    while vstream[vi].earliest < 0:
        E.emit(vstream[vi]); vi += 1
    stamp()

    tstream = [o for ts in tstreams[1:] for o in ts]
    streams = {"v": [vstream, vi], "b": [bstream, bi], "x": [xstream, xi], "t": [tstream, 0], "e": [[], 0]}
    def head(k):
        lst, i = streams[k]
        return lst[i] if i < len(lst) else None
    def pop(k):
        E.emit(head(k)); streams[k][1] += 1
    def force(op):
        for a in op.after:
            if a.pos is None:
                for k in streams:
                    lst, i = streams[k]
                    if a in lst[i:]:
                        while a.pos is None:
                            force(head(k)); pop(k); E.stats["over"] += 1
                        break
                else:
                    raise RuntimeError("dep not found " + a.txt)
    def ready(op, t):
        if op is None or op.earliest > t or any(a.pos is None for a in op.after) or E.hazard(op) > 0:
            return False
        av, al = E.youngest_needed_age(op)
        return not ((av is not None and av < cfg.age_vm) or (al is not None and al < cfg.age_lgkm))
    def cost(op):
        v, l = E.need_wait(op)
        return COST[op.kind] + (1 if (v is not None or l is not None) else 0) + (1 if op.kind == "B" and E.lg else 0)
    gapstat = {}
    marks = {step_start[chunks[ci][2]] for ci in (1, 3, 4, 5, 7)}
    for t in range(NM):
        if t in marks: stamp()
        E.emit(mf[t])
        n_before = E.n
        cap = 2
        if t + 1 < NM:
            v, l = E.need_wait(mf[t + 1])
            if v is not None or l is not None: cap -= 1
        first = True
        while cap > 0:
            if head("e") is None and items and items[0][2] <= t and not (items[0][0] == "basis" and cfg.pk):
                streams["e"][0] += expand(False)
            cands = []
            for prio, k in enumerate(("v", "b", "x", "t", "e")):
                op = head(k)
                if not ready(op, t): continue
                mem = op.kind in ("R", "G", "S", "W")
                if mem and not first: continue
                c = cost(op)
                if c > cap or (mem and c > COST[op.kind]): continue
                if k == "e" and op.deadline is not None: prio = 2.5
                cands.append((prio, k, c))
            if not cands: break
            cands.sort(); _, k, c = cands[0]
            pop(k); cap -= c; first = False
        again = True
        while again:
            again = False
            if head("e") is None and items and items[0][3] is not None and items[0][3] <= t:
                streams["e"][0] += expand(cfg.pk)
            for k in ("e", "t", "b", "v"):
                op = head(k)
                if op is not None and op.deadline is not None and op.deadline <= t:
                    force(op); pop(k); E.stats["over"] += 1; again = True
        g = E.n - n_before; gapstat[g] = gapstat.get(g, 0) + 1
    stamp()
    for k in ("v", "b", "x", "t"): assert head(k) is None, k
    ntail = E.n
    while head("e") is not None or items:
        if head("e") is None: streams["e"][0] += expand(cfg.pk)
        pop("e")
    ntail = E.n - ntail
    if cfg.stamps:
        A("s_waitcnt vmcnt(0)")
        A(f"s_memrealtime s[{sSTAMP + 2}:{sSTAMP + 3}]"); stamp(3)
        A("s_waitcnt lgkmcnt(0)")
        A("s_add_u32 s40, s8, 0x8000000"); A("s_addc_u32 s41, s9, 0")
        A("s_lshl_b32 s3, s2, 8"); A("v_mov_b32 v2, s3")
        ns = 2 * nstamp[0]
        for i in range(52): A(f"v_mov_b32 v{4 + i}, s{sSTAMP + min(i, ns - 2 + i % 2)}")
        A("v_cmp_eq_u32 vcc, 0, v0"); A("s_and_saveexec_b64 s[30:31], vcc"); A("s_cbranch_execz Lm_end")
        for i in range(13): A(f"global_store_dwordx4 v2, v[{4 + 4 * i}:{7 + 4 * i}], s[40:41] offset:{16 * i}")
        A("s_cmp_lg_u32 s2, 17"); A("s_cbranch_scc1 Lm_end")
        A(f"s_sub_u32 s42, s{sSTAMP + 2}, s{sSTAMP}"); A("v_mov_b32 v4, s42")
        for i in range(3, 16):
            A(f"s_sub_u32 s42, s{sSTAMP + 2 * i}, s{sSTAMP + 4}"); A(f"v_mov_b32 v{2 + i}, s42")
        A("v_mov_b32 v2, 0")
        A(f"global_store_dwordx2 v2, v[4:5], s[{sDBG}:{sDBG + 1}] offset:8")
        for i in range(3): A(f"global_store_dwordx4 v2, v[{6 + 4 * i}:{9 + 4 * i}], s[{sDBG}:{sDBG + 1}] offset:{16 + 16 * i}")
    A("Lm_end:")
    A("s_endpgm")
    A("Lm_fall:")
    E.vm.clear(); E.lg.clear(); E.pend.clear()
    A("s_waitcnt vmcnt(0)")
    A(f"s_mov_b32 s{sFAIL}, s{sNQ}")
    A("Lm_fl:")
    for i in range(32): A(f"v_mov_b32 v{uRAW + i}, 0")
    cfg.age_vm = 10 ** 9
    prod_loads(sFAIL); prod_compute(sFAIL)
    A("s_waitcnt vmcnt(0)")
    A(f"s_add_u32 s{sFAIL}, s{sFAIL}, 4"); A(f"s_cmp_lt_u32 s{sFAIL}, 256"); A("s_cbranch_scc1 Lm_fl")
    for i in range(8): A(f"s_mov_b32 s{sST + i}, {i * 4096}")
    A("s_barrier")
    A(f"s_mov_b32 s{sBO}, 0")
    for tx in b0: A(tx)
    A("s_waitcnt vmcnt(0)")
    A("s_branch Lm_resume")
    A("Lm_last:")
    A("s_endpgm")
    out = []
    for l in E.out:
        if l == "CONSTS_HERE":
            out += [f"s_mov_b32 s{r}, {u:#x}" for u, r in ctab.items()]
        else:
            out.append(l)
    sys.stderr.write(f"mfma {NM} instrs {E.n} stats {E.stats} gaps {sorted(gapstat.items())} tail {ntail} vgpr {vp[0]} consts {len(ctab)}\n")
    return out


def generate(cfg):
    selfcheck(cfg)
    L = ["; dilated causal conv (15 taps) + tanh*sigmoid gate; F(4,4) Toom-Cook over the taps, bf16 MFMA (emitted by a hand-written generator)",
         f"; @launch grid=(256,1,1) block=(256,1,1) lds={8 * US + 128}",
         '.amdgcn_target "amdgcn-amd-amdhsa--gfx950"', ".text"]
    L += gen_main(cfg)
    L += ['.section .rodata,"a"'] + kd(KN, 512, 256)
    return "\n".join(L) + "\n"


if __name__ == "__main__":
    ap = argparse.ArgumentParser(); ap.add_argument("out"); ap.add_argument("--set", action="append", default=[])
    a = ap.parse_args(); cfg = Cfg()
    for kv in a.set:
        k, v = kv.split("="); setattr(cfg, k, eval(v))
    open(a.out, "w").write(generate(cfg))
```
